```python
import torch

def _softmax(x, axis=-1):
    return torch.softmax(x, dim=axis)
def _gelu(x):
    return torch.nn.functional.gelu(x, approximate="tanh")
def _silu(x):
    return torch.nn.functional.silu(x)
def _sigmoid(x):
    return torch.sigmoid(x)
def _layernorm(x, axis=-1, eps=1e-5):
    m = x.mean(dim=axis, keepdim=True)
    v = x.var(dim=axis, keepdim=True, unbiased=False)
    return (x - m) / torch.sqrt(v + eps)
def _scatter_add(tgt, idx, src, axis=0):
    return tgt.clone().index_add_(axis, idx, src)
def _segment_sum(src, seg, n):
    out = torch.zeros((n,) + src.shape[1:], dtype=src.dtype)
    return out.index_add_(0, seg, src)
def _pad(x, pw):
    flat = tuple(v for pair in reversed(pw) for v in pair)
    return torch.nn.functional.pad(x, flat)

kernel_name = 'interleave_layers__ssm_conv_s4d__dense_activation_silu__prompt'

def setup_inputs():

    _w = (lambda a: (lambda t: t.to(torch.bfloat16) if t.is_floating_point() else t)(torch.as_tensor(a)))
    def _A_setup():
        Bsz, L, D, N = 1, 2048, 512, 128
        return {
            "u": _w((lambda *s: torch.randn(*s, dtype=torch.bfloat16) * 0.05)(Bsz, L, D)),
            "log_A_real": _w((lambda *s: torch.randn(*s, dtype=torch.bfloat16) * 3.2)(D, N) * 0.5),
            "A_imag": _w((lambda *s: torch.randn(*s, dtype=torch.bfloat16) * 0.05)(D, N) * 3.14),
            "C_real": _w((lambda *s: torch.randn(*s, dtype=torch.bfloat16) * 0.05)(D, N) / N ** 0.5),
            "C_imag": _w((lambda *s: torch.randn(*s, dtype=torch.bfloat16) * 0.05)(D, N) / N ** 0.5),
            "log_dt": _w((lambda *s: torch.randn(*s, dtype=torch.bfloat16) * 0.05)(D) * 0.5 - 4.0),
            "D_skip": _w((lambda *s: torch.randn(*s, dtype=torch.bfloat16) * 0.05)(D)),
        }
    _A_in = _A_setup()

    def _B_setup():
        B, S, D, F = 1, 2048, 512, 1792
        return {
            "x": _w((lambda *s: torch.randn(*s, dtype=torch.bfloat16) * 0.05)(B, S, D)),
            "w1": _w((lambda *s: torch.randn(*s, dtype=torch.bfloat16) * 0.8)(D, F) * (D ** -0.5)),
            "w2": _w((lambda *s: torch.randn(*s, dtype=torch.bfloat16) * 0.2)(F, D) * (F ** -0.5)),
        }
    _B_in = _B_setup()

    return {
        "A_u": _A_in["u"],
        "A_log_A_real": _A_in["log_A_real"],
        "A_A_imag": _A_in["A_imag"],
        "A_C_real": _A_in["C_real"],
        "A_C_imag": _A_in["C_imag"],
        "A_log_dt": _A_in["log_dt"],
        "A_D_skip": _A_in["D_skip"],
        "B_x": _B_in["x"],
        "B_w1": _B_in["w1"],
        "B_w2": _B_in["w2"],
    }

def reference(A_u, A_log_A_real, A_A_imag, A_C_real, A_C_imag, A_log_dt, A_D_skip, B_x, B_w1, B_w2):
    def _A_ref(u, log_A_real, A_imag, C_real, C_imag, log_dt, D_skip):
        L = u.shape[1]
        dt = torch.exp(log_dt)
        A = -torch.exp(log_A_real) + 1j * A_imag
        C = (C_real + 1j * C_imag) * dt[:, None]
        pos = (lambda x, dt: x.to(dt))(torch.arange(L), log_dt.dtype)
        P = torch.exp((A * dt[:, None])[:, :, None] * pos[None, None, :])
        K = 2.0 * torch.einsum("dn,dnl->dl", C, P).real
        L2 = 2 * L
        u_t = (lambda x, *d: x.permute(*d))(u, 0, 2, 1)
        Kf = (lambda x, *a, **k: torch.fft.rfft(x.float(), *a, **k))(K, L2)
        Uf = (lambda x, *a, **k: torch.fft.rfft(x.float(), *a, **k))(u_t, L2)
        y = (lambda x, *a, **k: torch.fft.irfft(x, *a, **k).to(torch.bfloat16))(Uf * Kf[None, :, :], L2)[:, :, :L]
        y = (lambda x, *d: x.permute(*d))(y, 0, 2, 1)
        return y + u * D_skip[None, None, :]

    def _B_ref(x, w1, w2):
        h = torch.einsum("bsd,df->bsf", x, w1)
        h = _silu(h)
        out = torch.einsum("bsf,fd->bsd", h, w2)
        return out

    x = A_u
    x = x + _A_ref(_layernorm(x, axis=-1), A_log_A_real, A_A_imag, A_C_real, A_C_imag, A_log_dt, A_D_skip)
    x = x + _B_ref(_layernorm(x, axis=-1), B_w1, B_w2)
    x = x + _A_ref(_layernorm(x, axis=-1), A_log_A_real, A_A_imag, A_C_real, A_C_imag, A_log_dt, A_D_skip)
    x = x + _B_ref(_layernorm(x, axis=-1), B_w1, B_w2)
    return x
```

```python
import re

TRANS = ("v_exp_f32", "v_log_f32", "v_rcp_f32", "v_rsq_f32", "v_sqrt_f32", "v_sin_f32", "v_cos_f32",
         "v_rcp_iflag_f32", "v_exp_f16", "v_rcp_f16")

_reg_re = re.compile(r"^(-|abs\(|\|)?([vsa])(\d+|\[(\d+):(\d+)\])\)?\|?$")


def regs_of(op):
    op = op.strip()
    if op in ("vcc", "exec", "m0", "scc", "vcc_lo", "vcc_hi", "exec_lo", "exec_hi"):
        base = op.split("_")[0]
        return {(base, 0)}
    m = _reg_re.match(op)
    if not m:
        return set()
    kind = m.group(2)
    if m.group(4) is not None:
        return {(kind, i) for i in range(int(m.group(4)), int(m.group(5)) + 1)}
    return {(kind, int(m.group(3)))}


def split_ops(rest):
    ops, depth, cur = [], 0, ""
    for ch in rest:
        if ch in "[(":
            depth += 1
        if ch in "])":
            depth -= 1
        if ch == "," and depth == 0:
            ops.append(cur.strip())
            cur = ""
        else:
            cur += ch
    last = cur.strip()
    mods = ""
    if last:
        depth = 0
        idx = len(last)
        for i, ch in enumerate(last):
            if ch in "[(":
                depth += 1
            if ch in "])":
                depth -= 1
            if ch == " " and depth == 0:
                idx = i
                break
        ops.append(last[:idx])
        mods = last[idx:].strip()
    return ops, mods


class Ins:
    def __init__(self, text):
        self.text = text
        t = text.split(";")[0].strip()
        self.label = None
        self.mn = None
        self.kind = None
        self.w = set()
        self.r = set()
        self.states = 1
        self.mods = ""
        self.ops = []
        if not t or t.startswith("."):
            self.kind = "dir"
            self.states = 0
            return
        if t.endswith(":"):
            self.label = t[:-1]
            self.kind = "label"
            self.states = 0
            return
        parts = t.split(None, 1)
        mn = parts[0]
        self.mn = mn
        ops, mods = split_ops(parts[1]) if len(parts) > 1 else ([], "")
        self.ops, self.mods = ops, mods
        R = [regs_of(o) for o in ops]
        U = lambda l: set().union(*l) if l else set()
        if mn == "s_nop":
            self.kind = "nop"
            self.states = int(ops[0], 0) + 1
        elif mn.startswith("v_mfma"):
            self.kind = "mfma"
            self.w = R[0]
            self.A, self.B, self.C = R[1], R[2], R[3]
            self.r = R[1] | R[2] | R[3]
            self.passes = 8 if "32x32" in mn else 4
            assert "bf16" in mn or "f16" in mn
        elif mn.startswith("v_"):
            self.kind = "valu"
            self.dpp = ("_dpp" in mn)
            self.trans = any(mn.startswith(x) for x in TRANS)
            if mn.startswith("v_cmp"):
                self.w = R[0]
                self.r = U(R[1:])
                if mn.startswith("v_cmpx"):
                    self.w |= {("exec", 0)}
            elif mn.startswith("v_permlane") and "swap" in mn:
                self.w = R[0] | R[1]
                self.r = R[0] | R[1]
            elif mn.startswith(("v_add_co", "v_sub_co", "v_subrev_co", "v_addc_co", "v_subb_co")):
                self.w = R[0] | R[1]
                self.r = U(R[2:])
            else:
                self.w = R[0]
                self.r = U(R[1:])
                if mn.startswith(("v_fmac", "v_dot2c", "v_writelane", "v_pk_fmac")) or self.dpp or "sdwa" in mn:
                    self.r |= R[0]
        elif mn.startswith("ds_"):
            self.kind = "ds"
            if mn.startswith(("ds_read", "ds_bpermute", "ds_permute", "ds_swizzle")):
                self.w = R[0]
                self.r = U(R[1:])
                if "d16" in mn:
                    self.r |= R[0]
            else:
                self.r = U(R)
        elif mn.startswith(("buffer_", "global_")):
            self.kind = "vmem"
            lds = (" lds" in (" " + mods)) or ("_lds_" in mn)
            self.lds = lds
            self.store = False
            if mn in ("buffer_wbl2", "buffer_inv"):
                pass
            elif "load" in mn:
                if lds:
                    self.r = U(R) | {("m0", 0)}
                else:
                    self.w = R[0]
                    self.r = U(R[1:])
            else:
                self.store = True
                self.r = U(R)
                if mn.startswith("buffer_"):
                    self.data = R[0]
                elif "atomic" in mn and "sc0" in mods:
                    self.w = R[0]
                    self.data = R[2]
                else:
                    self.data = R[1]
                if mn.startswith("buffer_") and "atomic" in mn and "sc0" in mods:
                    self.w = R[0]
                self.wide = ("x3" in mn or "x4" in mn)
        elif mn.startswith("s_"):
            self.kind = "salu"
            if mn.startswith(("s_cbranch", "s_branch")):
                self.kind = "branch"
                self.target = ops[0]
            elif mn.startswith(("s_cmp", "s_waitcnt", "s_barrier", "s_endpgm", "s_setprio", "s_sleep", "s_bitcmp")):
                self.r = U(R)
            elif mn.startswith(("s_load", "s_buffer_load", "s_memtime", "s_memrealtime")):
                self.kind = "smem"
                self.w = R[0]
                self.r = U(R[1:])
            else:
                self.w = R[0] if R else set()
                self.r = U(R[1:])
                if "saveexec" in mn:
                    self.w |= {("exec", 0)}
        else:
            raise ValueError("unknown instruction: " + text)


def is_s(x):
    return x[0] in ("s", "vcc", "exec")


def need(p, c):
    n = 0
    if p.kind == "valu":
        vw = {x for x in p.w if x[0] in "va" and x[0] != "vcc"}
        vw = {x for x in p.w if x[0] in ("v", "a")}
        sw = {x for x in p.w if is_s(x)}
        if c.kind == "vmem" and sw & c.r:
            n = max(n, 5)
        if c.kind == "valu":
            if c.dpp and vw & c.r:
                n = max(n, 2)
            if c.dpp and ("exec", 0) in p.w:
                n = max(n, 5)
            if sw & c.r:
                n = max(n, 4 if c.mn.startswith(("v_readlane", "v_writelane")) else 2)
            if c.mn.startswith(("v_cndmask", "v_addc", "v_subb")) and ("vcc", 0) in p.w:
                n = max(n, 2)
            if c.mn.startswith(("v_readlane", "v_readfirstlane")) and vw & c.r:
                n = max(n, 1)
            if p.trans and (vw & (c.r | c.w)):
                n = max(n, 1)
            if ("sdwa" in p.mn or "op_sel" in p.mods and not p.mn.startswith("v_pk")) and vw & (c.r | c.w):
                n = max(n, 1)
            if c.mn.startswith("v_permlane") and vw & c.r:
                n = max(n, 2)
            if ("exec", 0) in p.w and c.mn.startswith(("v_readlane", "v_readfirstlane", "v_writelane", "v_permlane")):
                n = max(n, 4)
        if p.mn.startswith("v_dot") and c.kind in ("valu", "mfma", "vmem", "ds") and vw & (c.r | c.w):
            same_c = c.mn == p.mn and not (vw & set().union(*[regs_of(o) for o in c.ops[1:3]]))
            if not same_c:
                n = max(n, 3)
        if c.kind == "mfma":
            if vw & c.r:
                n = max(n, 2)
            if ("exec", 0) in p.w:
                n = max(n, 4)
        if c.kind in ("salu", "smem", "branch") and (sw & c.r or (c.kind == "branch" and "vcc" in c.mn and ("vcc", 0) in p.w)):
            n = max(n, 2)
    if p.kind == "salu":
        if ("m0", 0) in p.w and c.kind == "vmem" and c.lds:
            n = max(n, 1)
    if p.kind == "vmem" and p.store and p.wide:
        if p.data & c.w:
            n = max(n, 2)
    if p.kind == "mfma":
        hi = p.passes == 8
        if c.kind == "mfma":
            if p.w & (c.A | c.B):
                n = max(n, 12 if hi else 8)
            if p.w & c.C and not (p.w == c.C and p.passes == c.passes):
                n = max(n, 10 if hi else 6)
            if p.w & c.w and not (p.w == c.C and p.passes == c.passes):
                n = max(n, 12 if hi else 8)
        elif c.kind in ("valu", "vmem", "ds"):
            if p.w & (c.r | c.w):
                n = max(n, 12 if hi else 8)
            if c.kind == "valu" and p.C & c.w:
                n = max(n, 7 if hi else 3)
    return n


WINDOW = 14


def deficit(window, c):
    dist = 0
    d = 0
    for p in reversed(window):
        if p.kind in ("dir", "label"):
            continue
        k = need(p, c)
        if k > dist:
            d = max(d, k - dist)
        dist += p.states
        if dist > WINDOW:
            break
    return d


def nops(n):
    out = []
    while n > 0:
        k = min(n, 16)
        out.append(Ins("    s_nop %d" % (k - 1)))
        n -= k
    return out


def pad_hazards(lines):
    ins = [Ins(l) for l in lines]
    out = []
    for c in ins:
        if c.kind not in ("dir", "label", "nop"):
            d = deficit(out[-40:], c)
            if d:
                out += nops(d)
        out.append(c)
    changed = True
    while changed:
        changed = False
        labels = {x.label: i for i, x in enumerate(out) if x.kind == "label"}
        for i, b in enumerate(out):
            if b.kind != "branch":
                continue
            t = labels[b.target]
            win = out[max(0, i - 40): i + 1]
            worst = 0
            seq = list(win)
            dist = 0
            for c in out[t: t + 40]:
                if c.kind in ("dir", "label"):
                    continue
                if c.kind != "nop":
                    worst = max(worst, deficit(seq, c))
                seq.append(c)
                dist += c.states
                if dist > WINDOW or c.mn in ("s_endpgm", "s_branch"):
                    break
            if worst:
                out[i:i] = nops(worst)
                changed = True
                break
    return [x.text for x in out]


class Asm:
    def __init__(self):
        self.lines = []

    def __call__(self, s):
        for l in s.strip("\n").split("\n"):
            l = l.strip()
            if not l:
                continue
            if l.endswith(":") or l.startswith("."):
                self.lines.append(l)
            else:
                self.lines.append("    " + l)

    def c(self, s):
        self.lines.append("    ; " + s)

    def text(self):
        return "\n".join(pad_hazards(self.lines)) + "\n"


def vr(a, n=1):
    return "v%d" % a if n == 1 else "v[%d:%d]" % (a, a + n - 1)


def ar(a, n=1):
    return "a%d" % a if n == 1 else "a[%d:%d]" % (a, a + n - 1)


def sr(a, n=1):
    return "s%d" % a if n == 1 else "s[%d:%d]" % (a, a + n - 1)


def f2u(x):
    import struct
    return "0x%08x" % struct.unpack("<I", struct.pack("<f", x))[0]
```

```python
import sys, math
from asmlib import *

NAME = "interleave_layers__ssm_conv_s4d__dense_activation_silu__prompt"

XQ0 = 0x0000000
XT1 = 0x0200000
XQ2 = 0x0400000
XT3 = 0x0600000
KR = 0x0800000
W1S = 0x0A00000
W2S = 0x0C00000
HH = 0x0E00000
ST0 = 0x1600000
ST2 = 0x1604000
KINV = 0x1608000
LOG2E = 1.4426950408889634
BLK = 229376


def kd(name, vgpr, sgpr, accum):
    return f""".amdhsa_kernel {name}
  .amdhsa_next_free_vgpr {vgpr}
  .amdhsa_next_free_sgpr {sgpr}
  .amdhsa_accum_offset {accum}
  .amdhsa_group_segment_fixed_size 0
  .amdhsa_kernarg_size 104
  .amdhsa_user_sgpr_count 2
  .amdhsa_user_sgpr_kernarg_segment_ptr 1
  .amdhsa_system_sgpr_workgroup_id_x 1
.end_amdhsa_kernel
"""


def head(a, name):
    a(f".globl {name}\n.p2align 8\n.type {name},@function\n{name}:")


def addr64(a, d, base, off):
    a(f"s_add_u32 s{d}, s{base}, {off}\ns_addc_u32 s{d+1}, s{base+1}, 0")


def unpack(a, lo, hi, src):
    a(f"v_lshlrev_b32 v{lo}, 16, v{src}\nv_and_b32 v{hi}, 0xffff0000, v{src}")


def wave_reduce(a, op, regs):
    for m in ("quad_perm:[1,0,3,2] row_mask:0xf", "quad_perm:[2,3,0,1] row_mask:0xf",
              "row_half_mirror row_mask:0xf", "row_mirror row_mask:0xf",
              "row_bcast:15 row_mask:0xa", "row_bcast:31 row_mask:0xc"):
        for r in regs:
            a(f"{op}_dpp v{r}, v{r}, v{r} {m} bank_mask:0xf")


def gen_prep(a):
    name = "prep_kernel"
    head(a, name)
    a(f"""
    s_cmp_ge_u32 s2, 256
    s_cbranch_scc1 prep_end
    s_load_dwordx16 s[4:19], s[0:1], 0
    s_load_dwordx4 s[20:23], s[0:1], 64
    s_load_dwordx2 s[24:25], s[0:1], 96
    v_and_b32 v1, 63, v0
    v_lshrrev_b32 v2, 6, v0
    v_readfirstlane_b32 s26, v2
    s_and_b32 s27, s2, 7
    s_lshl_b32 s27, s27, 5
    s_lshr_b32 s28, s2, 3
    s_or_b32 s27, s27, s28
    s_lshr_b32 s29, s26, 2
    s_lshl_b32 s28, s27, 1
    s_add_u32 s28, s28, s29
    s_lshl_b32 s30, s28, 8
    v_lshlrev_b32 v4, 2, v1
    v_add_u32 v3, s30, v4
    s_lshl_b32 s31, s27, 2
    """)
    a.c("s26=wave s27=cp s28=ch s29=ch&1 v1=lane v4=lane*4")
    a(f"""
    s_lshr_b32 s32, s2, 3
    s_and_b32 s33, s2, 7
    s_lshl_b32 s34, s32, 16
    s_lshl_b32 s35, s33, 7
    s_add_u32 s34, s34, s35
    s_lshl_b32 s35, s26, 4
    s_add_u32 s34, s34, s35
    v_lshlrev_b32 v5, 10, v1
    v_add_u32 v5, s34, v5
    s_lshl_b32 s35, s2, 3
    s_add_u32 s35, s35, s26
    s_lshl_b32 s36, s35, 10
    v_lshlrev_b32 v6, 4, v1
    v_add_u32 v6, s36, v6
    s_waitcnt lgkmcnt(0)
    s_load_dword s37, s[14:15], s31
    global_load_dword v10, v3, s[6:7]
    global_load_dword v11, v3, s[8:9]
    global_load_dword v12, v3, s[10:11]
    global_load_dword v13, v3, s[12:13]
    global_load_dwordx4 v[14:17], v5, s[4:5]
    global_load_dwordx4 v[18:21], v6, s[4:5]
    """)
    a.c("weight shuffle task: s40..43 SRD, s44 base, s45 stride1, s46 stride4, s47 dst, s48/s49 lane strides")
    a(f"""
    s_mul_i32 s38, s2, 7
    s_add_u32 s38, s38, s26
    s_mov_b32 s42, 1835008
    s_mov_b32 s43, 0x20000
    s_cmp_ge_u32 s38, 896
    s_cbranch_scc1 prep_w2
    s_mov_b32 s40, s20
    s_mov_b32 s41, s21
    s_mul_hi_u32 s39, s38, 306783379
    s_mul_i32 s44, s39, 14
    s_sub_u32 s50, s38, s44
    s_mul_i32 s44, s39, {8*3584}
    s_lshl_b32 s45, s50, 8
    s_add_u32 s44, s44, s45
    s_mov_b32 s45, 3584
    s_mov_b32 s46, {4*3584}
    s_lshl_b32 s47, s50, 17
    s_lshl_b32 s51, s39, 9
    s_add_u32 s47, s47, s51
    s_add_u32 s47, s47, {W1S}
    s_mov_b32 s48, 65536
    s_mov_b32 s49, 32768
    s_branch prep_wj
    prep_w2:
    s_mov_b32 s40, s22
    s_mov_b32 s41, s23
    s_sub_u32 s38, s38, 896
    s_lshr_b32 s39, s38, 2
    s_and_b32 s50, s38, 3
    s_lshr_b32 s51, s39, 1
    s_and_b32 s52, s39, 1
    s_lshl_b32 s44, s51, 14
    s_lshl_b32 s45, s52, 12
    s_add_u32 s44, s44, s45
    s_lshl_b32 s45, s50, 8
    s_add_u32 s44, s44, s45
    s_mov_b32 s45, 1024
    s_mov_b32 s46, 8192
    s_mul_i32 s47, s50, {2*BLK}
    s_lshl_b32 s53, s51, 11
    s_add_u32 s47, s47, s53
    s_lshl_b32 s53, s52, 9
    s_add_u32 s47, s47, s53
    s_add_u32 s47, s47, {W2S}
    s_mov_b32 s48, {BLK}
    s_mov_b32 s49, 1024
    prep_wj:
    s_cmp_eq_u32 s26, 7
    s_cbranch_scc1 prep_noload
    s_add_u32 s54, s44, s46
    """)
    for j in range(4):
        a(f"buffer_load_dword v{22+j}, v4, s[40:43], s44 offen")
        a(f"buffer_load_dword v{26+j}, v4, s[40:43], s54 offen")
        if j < 3:
            a("s_add_u32 s44, s44, s45\ns_add_u32 s54, s54, s45")
    a("prep_noload:")
    a.c("v30..37: gather addresses; v38:39 = (pc,pf); v40..: T write addrs")
    TB = 16384
    TS = 12288
    a(f"""
    v_and_b32 v7, 255, v0
    v_lshlrev_b32 v8, 3, v7
    v_sub_u32 v8, 2047, v8
    s_mul_i32 s55, s29, {4*TS}
    s_add_u32 s55, s55, {TB}
    """)
    for e in range(0, 8, 2):
        a(f"""
        v_subrev_u32 v44, {e}, v8
        v_subrev_u32 v45, {e+1}, v8
        v_cvt_f32_u32 v44, v44
        v_cvt_f32_u32 v45, v45
        v_cvt_pk_bf16_f32 v46, v44, v45
        """)
        unpack(a, 44, 45, 46)
        a("v_cvt_u32_f32 v44, v44\nv_cvt_u32_f32 v45, v45")
        for k in range(2):
            p = 44 + k
            a(f"""
            v_lshrrev_b32 v46, 8, v{p}
            v_and_b32 v47, 7, v{p}
            v_lshl_or_b32 v46, v46, 3, v47
            v_bfe_u32 v47, v{p}, 3, 5
            v_lshl_or_b32 v46, v46, 5, v47
            v_lshl_add_u32 v{30+e+k}, v46, 2, s55
            """)
    a(f"""
    v_and_b32 v44, 31, v1
    v_lshlrev_b32 v45, 3, v44
    v_cvt_f32_u32 v39, v45
    v_lshlrev_b32 v45, 1, v44
    v_add_u32 v45, 240, v45
    v_cmp_gt_u32 vcc, 8, v44
    v_cndmask_b32 v46, v45, v44, vcc
    v_and_b32 v45, 1, v44
    v_lshlrev_b32 v45, 2, v45
    v_and_b32 v47, 2, v44
    v_lshl_add_u32 v45, v47, 7, v45
    v_add_u32 v45, 512, v45
    v_cmp_gt_u32 vcc, 12, v44
    v_cndmask_b32 v46, v45, v46, vcc
    v_lshlrev_b32 v45, 8, v44
    v_subrev_u32 v45, 3072, v45
    v_cmp_gt_u32 vcc, 16, v44
    v_cndmask_b32 v46, v45, v46, vcc
    v_cvt_f32_u32 v38, v46
    """)
    a(f"""
    s_mul_i32 s56, s26, {TS}
    s_add_u32 s56, s56, {TB}
    v_lshrrev_b32 v45, 5, v1
    v_lshl_add_u32 v44, v44, 2, s56
    v_lshl_add_u32 v40, v45, 9, v44
    v_lshl_add_u32 v48, v45, 12, v44
    v_lshl_add_u32 v41, v45, 10, v44
    v_lshlrev_b32 v46, 8, v45
    v_add_u32 v46, 256, v46
    v_add_u32 v42, v41, v46
    v_add_u32 v43, v42, v46
    v_add_u32 v49, v43, v46
    """)
    a.c("v40: g0 base (off r*128); v41,v42,v43,v49: g1 r=0..3 (off 1024); v48: g2 base (off 4096+r*1024)")
    a(f"""
    s_lshl_b32 s57, s26, 11
    v_lshl_add_u32 v50, v1, 5, s57
    s_and_b32 s58, s26, 3
    s_lshl_b32 s58, s58, 9
    s_add_u32 s58, s58, s57
    v_lshl_add_u32 v51, v45, 6, s58
    """)
    a(f"""
    s_waitcnt vmcnt(0) lgkmcnt(0)
    s_lshl_b32 s59, s29, 4
    s_lshr_b32 s37, s37, s59
    s_lshl_b32 s37, s37, 16
    s_mov_b32 s60, {f2u(LOG2E)}
    v_mov_b32 v52, s60
    v_mul_f32 v52, s37, v52
    """)
    unpack(a, 54, 58, 10)
    a(f"""
    v_mul_f32 v54, s60, v54
    v_mul_f32 v58, s60, v58
    v_exp_f32 v52, v52
    v_exp_f32 v54, v54
    v_exp_f32 v58, v58
    """)
    unpack(a, 55, 59, 11)
    unpack(a, 56, 60, 12)
    unpack(a, 57, 61, 13)
    a(f"""
    v_cvt_pk_bf16_f32 v52, v52, v52
    v_cvt_pk_bf16_f32 v53, v54, v58
    v_lshlrev_b32 v52, 16, v52
    """)
    unpack(a, 54, 58, 53)
    for r in range(54, 62):
        a(f"v_mul_f32 v{r}, v52, v{r}")
    a(f"""
    v_max3_f32 v53, abs(v56), abs(v57), abs(v60)
    v_max_f32 v53, abs(v61), v53
    s_mov_b32 s61, {f2u(-LOG2E)}
    v_mul_f32 v54, s61, v54
    v_mul_f32 v58, s61, v58
    v_mul_f32 v55, 0.15915494, v55
    v_mul_f32 v59, 0.15915494, v59
    """.replace("v_max_f32 v53, abs(v61), v53", "v_max_f32_e64 v53, abs(v61), v53"))
    wave_reduce(a, "v_max_f32", [53])
    a(f"""
    v_readlane_b32 s62, v53, 63
    v_frexp_exp_i32_f32 v53, s62
    s_movk_i32 s63, 110
    v_med3_i32 v53, v53, s63, -100
    v_sub_u32 v62, 7, v53
    v_subrev_u32 v63, 6, v53
    v_ldexp_f32 v62, 1.0, v62
    v_ldexp_f32 v63, 1.0, v63
    v_mul_f32 v56, v62, v56
    v_mul_f32 v57, v62, v57
    v_mul_f32 v60, v62, v60
    v_mul_f32 v61, v62, v61
    """.replace("v_med3_i32 v53, v53, s63, -100", "v_min_i32 v53, s63, v53\nv_max_i32 v53, -100, v53"))
    a("ds_write_b128 v50, v[54:57]\nds_write_b128 v50, v[58:61] offset:16")
    a(f"""
    s_lshl_b32 s64, s33, 4
    s_lshl_b32 s65, s26, 1
    s_add_u32 s64, s64, s65
    s_lshl_b32 s64, s64, 14
    s_lshl_b32 s65, s32, 9
    s_add_u32 s64, s64, s65
    s_add_u32 s64, s64, {XQ0}
    v_lshl_add_u32 v5, v1, 3, s64
    v_add_u32 v6, 16384, v5
    global_store_dwordx2 v5, v[14:15], s[24:25]
    global_store_dwordx2 v6, v[16:17], s[24:25]
    """)
    a("s_waitcnt lgkmcnt(0)")
    for s in range(4):
        for i in range(4):
            a(f"ds_read_b128 v[{64+16*s+4*i}:{64+16*s+4*i+3}], v51 offset:{(8*s+i)*16}")
    a(f"""
    s_mov_b32 s66, 0x3f803f80
    v_mov_b32 v8, 0
    v_mov_b32 v9, 0
    """)
    for r in range(18, 22):
        a(f"v_dot2c_f32_bf16 v8, s66, v{r}\nv_dot2c_f32_bf16 v9, v{r}, v{r}")
    a("s_nop 2")
    wave_reduce(a, "v_add_f32", [8, 9])
    a(f"""
    s_lshl_b32 s65, s35, 3
    s_add_u32 s65, s65, {ST0}
    v_mov_b32 v5, s65
    s_lshl_b32 s65, s28, 2
    s_add_u32 s65, s65, {KINV}
    v_mov_b32 v6, s65
    s_lshl_b64 exec, 1, 63
    global_store_dwordx2 v5, v[8:9], s[24:25]
    global_store_dword v6, v63, s[24:25]
    s_mov_b64 exec, -1
    s_cmp_eq_u32 s26, 7
    s_cbranch_scc1 prep_zero
    s_mov_b32 s67, 0x05040100
    s_mov_b32 s68, 0x07060302
    """)
    for j in range(4):
        a(f"v_perm_b32 v{14+j}, v{22+2*j+1}, v{22+2*j}, s67")
        a(f"v_perm_b32 v{18+j}, v{22+2*j+1}, v{22+2*j}, s68")
    a(f"""
    v_lshrrev_b32 v5, 5, v1
    v_mul_lo_u32 v5, v5, s48
    v_bfe_u32 v6, v1, 4, 1
    v_mul_lo_u32 v6, v6, s49
    v_and_b32 v7, 15, v1
    v_lshlrev_b32 v7, 5, v7
    v_add3_u32 v5, v5, v6, v7
    v_add_u32 v5, s47, v5
    global_store_dwordx4 v5, v[14:17], s[24:25]
    global_store_dwordx4 v5, v[18:21], s[24:25] offset:16
    s_branch prep_eval
    prep_zero:
    s_lshl_b32 s65, s2, 6
    s_add_u32 s65, s65, {ST2}
    v_add_u32 v5, s65, v4
    v_mov_b32 v6, 0
    s_mov_b64 exec, 0xffff
    global_store_dword v5, v6, s[24:25]
    s_mov_b64 exec, -1
    prep_eval:
    """)
    ACC = 128
    AF, BF = 144, 148
    T0 = 152
    for s in range(4):
        a(f"s_waitcnt lgkmcnt({min(15, 12 - 4*s)})")
        P = lambda i: 64 + 16 * s + 4 * i
        T = lambda i: T0 + 8 * i
        for i in range(4):
            a(f"v_pk_mul_f32 v[{T(i)}:{T(i)+1}], v[38:39], v[{P(i)}:{P(i)+1}] op_sel:[0,0] op_sel_hi:[1,0]")
            a(f"v_pk_mul_f32 v[{T(i)+2}:{T(i)+3}], v[38:39], v[{P(i)}:{P(i)+1}] op_sel:[0,1] op_sel_hi:[1,1]")
        for i in range(4):
            a(f"v_fract_f32 v{T(i)+2}, v{T(i)+2}\nv_fract_f32 v{T(i)+3}, v{T(i)+3}")
        for i in range(4):
            a(f"v_exp_f32 v{T(i)}, v{T(i)}\nv_exp_f32 v{T(i)+1}, v{T(i)+1}")
        for i in range(4):
            a(f"v_cos_f32 v{T(i)+4}, v{T(i)+2}\nv_sin_f32 v{T(i)+5}, v{T(i)+2}")
            a(f"v_cos_f32 v{T(i)+6}, v{T(i)+3}\nv_sin_f32 v{T(i)+7}, v{T(i)+3}")
        for i in range(4):
            a(f"v_pk_mul_f32 v[{T(i)+2}:{T(i)+3}], v[{T(i)+4}:{T(i)+5}], v[{P(i)+2}:{P(i)+3}] op_sel:[0,0] op_sel_hi:[1,0]")
            a(f"v_pk_mul_f32 v[{T(i)+6}:{T(i)+7}], v[{T(i)+6}:{T(i)+7}], v[{T(i)}:{T(i)+1}] op_sel:[0,1] op_sel_hi:[1,1]")
        for i in range(4):
            a(f"v_pk_fma_f32 v[{T(i)+2}:{T(i)+3}], v[{T(i)+4}:{T(i)+5}], v[{P(i)+2}:{P(i)+3}], v[{T(i)+2}:{T(i)+3}] op_sel:[1,1,0] op_sel_hi:[0,1,1] neg_lo:[0,1,0]")
            a(f"v_cvt_pk_f16_f32 v{BF+i}, v{T(i)+6}, v{T(i)+7}")
        for i in range(4):
            a(f"v_pk_mul_f32 v[{T(i)+2}:{T(i)+3}], v[{T(i)+2}:{T(i)+3}], v[{T(i)}:{T(i)+1}] op_sel:[0,0] op_sel_hi:[1,0] neg_hi:[0,1]")
        for i in range(4):
            a(f"v_cvt_pk_f16_f32 v{AF+i}, v{T(i)+2}, v{T(i)+3}")
        c = "0" if s == 0 else f"v[{ACC}:{ACC+15}]"
        a(f"v_mfma_f32_32x32x16_f16 v[{ACC}:{ACC+15}], v[{AF}:{AF+3}], v[{BF}:{BF+3}], {c}")
    for r in range(4):
        a(f"ds_write_b32 v40, v{ACC+r} offset:{r*128}")
    for r, ad in enumerate((41, 42, 43, 49)):
        a(f"ds_write_b32 v{ad}, v{ACC+4+r} offset:1024")
    for r in range(4):
        a(f"ds_write_b32 v48, v{ACC+8+r} offset:{4096+r*1024}")
    a("s_waitcnt lgkmcnt(0)\ns_barrier")
    for q in range(4):
        for e in range(8):
            a(f"ds_read_b32 v{64+8*q+e}, v{30+e} offset:{q*TS}")
    a(f"""
    s_lshl_b32 s65, s28, 12
    s_add_u32 s65, s65, {KR}
    v_and_b32 v7, 255, v0
    v_lshl_add_u32 v5, v7, 4, s65
    s_waitcnt lgkmcnt(0)
    """)
    for e in range(0, 8, 2):
        a(f"v_pk_add_f32 v[{64+e}:{65+e}], v[{64+e}:{65+e}], v[{72+e}:{73+e}]")
        a(f"v_pk_add_f32 v[{80+e}:{81+e}], v[{80+e}:{81+e}], v[{88+e}:{89+e}]")
    for e in range(0, 8, 2):
        a(f"v_pk_add_f32 v[{64+e}:{65+e}], v[{64+e}:{65+e}], v[{80+e}:{81+e}]")
    for e in range(0, 8, 2):
        a(f"v_cvt_pk_f16_f32 v{96+e//2}, v{64+e}, v{65+e}")
    a("global_store_dwordx4 v5, v[96:99], s[24:25]")
    a("prep_end:\ns_endpgm")
    return kd(name, 184, 72, 184), (name, 256, 512, 16384 + 8 * TS)


def ln_finalize(a, s1, s2, t, c512, eps):
    (a1, b1), (a2, b2) = s1, s2
    a(f"""
    v_mul_f32 v{a1}, {c512}, v{a1}
    v_mul_f32 v{b1}, {c512}, v{b1}
    v_mul_f32 v{a2}, {c512}, v{a2}
    v_mul_f32 v{b2}, {c512}, v{b2}
    v_fma_f32 v{a2}, -v{a1}, v{a1}, v{a2}
    v_fma_f32 v{b2}, -v{b1}, v{b1}, v{b2}
    v_max_f32 v{a2}, 0, v{a2}
    v_max_f32 v{b2}, 0, v{b2}
    v_cvt_pk_bf16_f32 v{t}, v{a1}, v{b1}
    """)
    unpack(a, a1, b1, t)
    a(f"v_cvt_pk_bf16_f32 v{t}, v{a2}, v{b2}")
    unpack(a, a2, b2, t)
    a(f"v_add_f32 v{a2}, {eps}, v{a2}\nv_add_f32 v{b2}, {eps}, v{b2}")
    a(f"v_cvt_pk_bf16_f32 v{t}, v{a2}, v{b2}")
    unpack(a, a2, b2, t)
    a(f"v_sqrt_f32 v{a2}, v{a2}\nv_sqrt_f32 v{b2}, v{b2}")
    a(f"v_cvt_pk_bf16_f32 v{t}, v{a2}, v{b2}")
    unpack(a, a2, b2, t)
    a(f"v_rcp_f32 v{a2}, v{a2}\nv_rcp_f32 v{b2}, v{b2}")


def gen_conv(a):
    KCS = 4160
    KC = lambda c: c * 4 * KCS
    UB = 8 * KCS
    US = 7680
    YB = UB + 2 * US
    YS = 9216
    LDS = YB + 4 * YS
    head(a, "conv1_kernel")
    a(f"s_mov_b32 s3, {XQ0}\ns_mov_b32 s4, {ST0}\ns_mov_b32 s5, {XT1}\ns_branch conv_body")
    head(a, "conv2_kernel")
    a(f"s_mov_b32 s3, {XQ2}\ns_mov_b32 s4, {ST2}\ns_mov_b32 s5, {XT3}")
    a("conv_body:")
    a(f"""
    s_cmp_ge_u32 s2, 256
    s_cbranch_scc1 conv_end
    s_load_dwordx2 s[6:7], s[0:1], 48
    s_load_dwordx2 s[8:9], s[0:1], 96
    v_and_b32 v1, 63, v0
    v_lshrrev_b32 v2, 6, v0
    v_readfirstlane_b32 s10, v2
    s_and_b32 s11, s2, 7
    s_lshl_b32 s11, s11, 5
    s_lshr_b32 s12, s2, 3
    s_or_b32 s11, s11, s12
    s_lshr_b32 s12, s11, 1
    s_lshl_b32 s12, s12, 14
    s_and_b32 s13, s11, 1
    s_lshl_b32 s13, s13, 2
    s_add_u32 s12, s12, s13
    s_add_u32 s12, s12, s3
    v_lshlrev_b32 v3, 5, v0
    v_add_u32 v4, s12, v3
    v_add_u32 v5, s4, v3
    s_lshl_b32 s13, s11, 13
    s_add_u32 s13, s13, {KR}
    v_lshl_add_u32 v6, v0, 4, s13
    s_lshl_b32 s14, s11, 2
    s_lshl_b32 s15, s11, 3
    s_add_u32 s15, s15, {KINV}
    s_waitcnt lgkmcnt(0)
    global_load_dwordx4 v[40:43], v6, s[8:9]
    global_load_dwordx4 v[44:47], v6, s[8:9] offset:4
    global_load_dword v48, v6, s[8:9] offset:20
    global_load_dwordx4 v[24:27], v5, s[8:9]
    global_load_dwordx4 v[28:31], v5, s[8:9] offset:16
    global_load_dwordx4 v[16:19], v4, s[8:9]
    global_load_dwordx4 v[20:23], v4, s[8:9] offset:16
    s_load_dword s16, s[6:7], s14
    s_load_dwordx2 s[18:19], s[8:9], s15
    """)
    a.c("zero fills: U pad rows (2*2560 B) and K tails")
    a(f"""
    v_mov_b32 v8, 0
    v_mov_b32 v9, 0
    v_mov_b32 v10, 0
    v_mov_b32 v11, 0
    v_lshlrev_b32 v7, 4, v0
    v_add_u32 v12, {UB}, v7
    v_cmp_gt_u32 vcc, 160, v0
    s_and_saveexec_b64 s[20:21], vcc
    ds_write_b128 v12, v[8:11]
    ds_write_b128 v12, v[8:11] offset:{US}
    s_mov_b64 exec, s[20:21]
    v_lshrrev_b32 v12, 2, v0
    v_mul_u32_u24 v12, {KCS}, v12
    v_and_b32 v13, 3, v0
    v_lshl_add_u32 v12, v13, 4, v12
    v_cmp_gt_u32 vcc, 32, v0
    s_and_saveexec_b64 s[20:21], vcc
    ds_write_b128 v12, v[8:11] offset:4096
    s_mov_b64 exec, s[20:21]
    """)
    a.c("addresses: v12 = K copy write, v13 = U write, v14 = Y read, v15 = out store")
    a(f"""
    v_and_b32 v7, 255, v0
    s_lshr_b32 s17, s10, 2
    s_mul_i32 s17, s17, {4*KCS}
    v_lshl_add_u32 v12, v7, 4, s17
    v_cmp_eq_u32 s[22:23], 255, v7
    v_lshrrev_b32 v7, 3, v0
    v_and_b32 v2, 7, v0
    v_mul_u32_u24 v13, 80, v7
    v_lshl_add_u32 v13, v2, 3, v13
    v_add_u32 v13, {UB + 32*80}, v13
    v_mul_u32_u24 v14, 144, v7
    v_lshl_add_u32 v14, v2, 4, v14
    v_add_u32 v14, {YB}, v14
    s_lshl_b32 s13, s11, 13
    s_add_u32 s13, s13, s5
    v_lshl_add_u32 v15, v0, 3, s13
    """.replace("v_cmp_eq_u32 s[22:23], 255, v7", "s_movk_i32 s24, 255\nv_cmp_eq_u32 s[22:23], s24, v7"))
    a.c("MFMA operand addresses: v2 = A, v3 = B, v4 = Y write")
    a(f"""
    v_and_b32 v7, 31, v1
    v_lshrrev_b32 v5, 5, v1
    s_and_b32 s24, s10, 1
    s_bfe_u32 s25, s10, 0x10001
    v_and_b32 v2, 3, v7
    v_sub_u32 v2, 3, v2
    v_mul_u32_u24 v2, {KCS}, v2
    v_and_b32 v3, 28, v7
    v_lshlrev_b32 v3, 1, v3
    v_sub_u32 v2, v2, v3
    v_lshl_add_u32 v2, v5, 4, v2
    s_mul_i32 s26, s25, {4*KCS}
    s_lshl_b32 s27, s24, 5
    s_add_u32 s26, s26, s27
    s_add_u32 s26, s26, 56
    v_add_u32 v2, s26, v2
    v_mul_u32_u24 v3, 80, v7
    v_lshl_add_u32 v3, v5, 4, v3
    s_mul_i32 s26, s25, {US}
    s_add_u32 s26, s26, s27
    s_add_u32 s26, s26, {UB + 80}
    v_add_u32 v3, s26, v3
    v_mul_u32_u24 v4, 144, v7
    v_lshl_add_u32 v4, v5, 4, v4
    s_mul_i32 s26, s10, {YS}
    s_add_u32 s26, s26, {YB}
    v_add_u32 v4, s26, v4
    """)
    a.c("K copies")
    a("s_waitcnt vmcnt(4)")
    a("v_cndmask_b32 v47, v47, 0, s[22:23]\nv_cndmask_b32 v48, v48, 0, s[22:23]")
    a("ds_write_b128 v12, v[40:43]")
    for i in range(4):
        a(f"v_alignbit_b32 v{52+i}, v{44+i}, v{40+i}, 16")
    a(f"ds_write_b128 v12, v[44:47] offset:{2*KCS}")
    for i in range(4):
        a(f"v_alignbit_b32 v{56+i}, v{45+i}, v{44+i}, 16")
    a(f"ds_write_b128 v12, v[52:55] offset:{KCS}")
    a(f"ds_write_b128 v12, v[56:59] offset:{3*KCS}")
    a.c("LN stats")
    a(f"s_mov_b32 s26, {f2u(1.0/512)}\ns_mov_b32 s27, {f2u(1e-5)}\ns_waitcnt vmcnt(2)")
    ln_finalize(a, (24, 26), (25, 27), 60, "s26", "s27")
    ln_finalize(a, (28, 30), (29, 31), 61, "s26", "s27")
    a("s_waitcnt vmcnt(0) lgkmcnt(0)")
    a("s_lshl_b32 s28, s16, 16\ns_and_b32 s29, s16, 0xffff0000")
    for k in range(4):
        unpack(a, 32 + 2 * k, 33 + 2 * k, 16 + 2 * k)
    for k in range(4):
        a(f"v_pk_add_f32 v[{40+2*k}:{41+2*k}], v[{32+2*k}:{33+2*k}], v[{24+2*k}:{25+2*k}] op_sel:[0,0] op_sel_hi:[1,0] neg_lo:[0,1] neg_hi:[0,1]")
    for k in range(4):
        a(f"v_cvt_pk_bf16_f32 v{16+k}, v{40+2*k}, v{41+2*k}")
    for k in range(4):
        unpack(a, 40 + 2 * k, 41 + 2 * k, 16 + k)
    for k in range(4):
        a(f"v_pk_mul_f32 v[{40+2*k}:{41+2*k}], v[{40+2*k}:{41+2*k}], v[{24+2*k}:{25+2*k}] op_sel:[0,1] op_sel_hi:[1,1]")
    for k in range(4):
        a(f"v_cvt_pk_bf16_f32 v{16+k}, v{40+2*k}, v{41+2*k}")
    for k in range(4):
        unpack(a, 40 + 2 * k, 41 + 2 * k, 16 + k)
    a("""
    v_cvt_pk_f16_f32 v20, v40, v42
    v_cvt_pk_f16_f32 v21, v44, v46
    v_cvt_pk_f16_f32 v22, v41, v43
    v_cvt_pk_f16_f32 v23, v45, v47
    """)
    a(f"ds_write_b64 v13, v[20:21]\nds_write_b64 v13, v[22:23] offset:{US}")
    for k in range(4):
        a(f"v_pk_mul_f32 v[{40+2*k}:{41+2*k}], v[{40+2*k}:{41+2*k}], s[28:29]")
    for k in range(4):
        a(f"v_cvt_pk_bf16_f32 v{16+k}, v{40+2*k}, v{41+2*k}")
    for k in range(4):
        unpack(a, 40 + 2 * k, 41 + 2 * k, 16 + k)
    a("s_waitcnt lgkmcnt(0)\ns_barrier")
    a("s_cmp_ge_u32 s10, 4\ns_cbranch_scc1 conv_join")
    ACC0, ACC1 = 64, 80
    NB = 3
    BUF = 96

    def reads(d):
        b = BUF + 16 * (d % NB)
        o1 = 64 * (63 - d)
        o2 = 64 * (63 - d - 32)
        a(f"ds_read_b64 v[{b}:{b+1}], v2 offset:{o1}")
        a(f"ds_read_b64 v[{b+2}:{b+3}], v2 offset:{o1+8}")
        a(f"ds_read_b128 v[{b+8}:{b+11}], v3 offset:{80*(31-d)}")
        a(f"ds_read_b128 v[{b+12}:{b+15}], v3 offset:{80*(31-d)+2560}")
        a(f"ds_read_b64 v[{b+4}:{b+5}], v2 offset:{o2}")
        a(f"ds_read_b64 v[{b+6}:{b+7}], v2 offset:{o2+8}")

    reads(0)
    reads(1)
    for d in range(32):
        if d + 2 < 32:
            reads(d + 2)
            a("s_waitcnt lgkmcnt(12)")
        elif d + 1 < 32:
            a("s_waitcnt lgkmcnt(6)")
        else:
            a("s_waitcnt lgkmcnt(0)")
        b = BUF + 16 * (d % NB)
        c0 = "0" if d == 0 else f"v[{ACC0}:{ACC0+15}]"
        c1 = "0" if d == 0 else f"v[{ACC1}:{ACC1+15}]"
        a(f"v_mfma_f32_32x32x16_f16 v[{ACC0}:{ACC0+15}], v[{b}:{b+3}], v[{b+8}:{b+11}], {c0}")
        a(f"v_mfma_f32_32x32x16_f16 v[{ACC1}:{ACC1+15}], v[{b}:{b+3}], v[{b+12}:{b+15}], {c1}")
        a(f"v_mfma_f32_32x32x16_f16 v[{ACC1}:{ACC1+15}], v[{b+4}:{b+7}], v[{b+8}:{b+11}], v[{ACC1}:{ACC1+15}]")
    for g in range(4):
        a(f"ds_write_b128 v4, v[{ACC0+4*g}:{ACC0+4*g+3}] offset:{32*g}")
    for g in range(4):
        a(f"ds_write_b128 v4, v[{ACC1+4*g}:{ACC1+4*g+3}] offset:{32*g+32*144}")
    a("s_waitcnt lgkmcnt(0)")
    a("conv_join:\ns_barrier")
    for w in range(4):
        a(f"ds_read_b128 v[{48+4*w}:{51+4*w}], v14 offset:{w*YS}")
    a("s_waitcnt lgkmcnt(0)")
    for c in range(2):
        y = 48 + 8 * c
        for k in range(0, 4, 2):
            a(f"v_pk_add_f32 v[{y+k}:{y+k+1}], v[{y+k}:{y+k+1}], v[{y+4+k}:{y+5+k}]")
        for k in range(4):
            a(f"v_mul_f32 v{y+k}, s{18+c}, v{y+k}")
        for k in range(0, 4, 2):
            a(f"v_cvt_pk_bf16_f32 v{y+4+k}, v{y+k}, v{y+k+1}")
        for k in range(0, 4, 2):
            unpack(a, y + k, y + k + 1, y + 4 + k)
        for k in range(4):
            a(f"v_add_f32 v{y+k}, v{y+k}, v{40+2*k+c}")
        for k in range(0, 4, 2):
            a(f"v_cvt_pk_bf16_f32 v{y+4+k}, v{y+k}, v{y+k+1}")
        for k in range(0, 4, 2):
            unpack(a, y + k, y + k + 1, y + 4 + k)
        for k in range(4):
            a(f"v_add_f32 v{y+k}, v{y+k}, v{32+2*k+c}")
        a(f"v_cvt_pk_bf16_f32 v{y+4}, v{y}, v{y+1}\nv_cvt_pk_bf16_f32 v{y+5}, v{y+2}, v{y+3}")
        if c == 1:
            a("v_add_u32 v15, 4096, v15")
        a(f"global_store_dwordx2 v15, v[{y+4}:{y+5}], s[8:9]")
    a("conv_end:\ns_endpgm")
    nv = BUF + 16 * NB
    return (kd("conv1_kernel", nv, 40, nv) + ".p2align 6\n" + kd("conv2_kernel", nv, 40, nv),
            ("conv1_kernel", 256, 512, LDS), ("conv2_kernel", 256, 512, LDS))


def gen_g1(a):
    SX = 131072
    LDS = SX + 1024
    head(a, "g1a_kernel")
    a(f"s_mov_b32 s3, {XT1}\ns_branch g1_body")
    head(a, "g1b_kernel")
    a(f"s_mov_b32 s3, {XT3}")
    a("g1_body:")
    a(f"""
    s_cmp_ge_u32 s2, 224
    s_cbranch_scc1 g1_end
    s_load_dwordx2 s[8:9], s[0:1], 96
    v_and_b32 v1, 63, v0
    v_lshrrev_b32 v2, 6, v0
    v_readfirstlane_b32 s10, v2
    s_and_b32 s11, s2, 7
    s_lshr_b32 s12, s2, 3
    s_lshl_b32 s11, s11, 1
    s_sub_u32 s13, s12, 14
    s_cmp_ge_u32 s12, 14
    s_cselect_b32 s12, s13, s12
    s_addc_u32 s11, s11, 0
    """)
    a.c("s11 = row block (128 rows), s12 = f block, s10 = wave; s13 = f tile")
    a(f"""
    s_lshl_b32 s13, s12, 2
    s_add_u32 s13, s13, s10
    v_lshrrev_b32 v2, 4, v1
    v_and_b32 v3, 15, v1
    v_lshlrev_b32 v4, 2, v2
    v_xor_b32 v4, v4, v3
    v_lshlrev_b32 v4, 4, v4
    v_lshl_add_u32 v4, v2, 12, v4
    s_lshl_b32 s14, s11, 8
    v_add_u32 v4, s14, v4
    v_lshlrev_b32 v5, 4, v1
    s_lshl_b32 s15, s13, 15
    s_add_u32 s15, s15, {W1S}
    s_lshl_b32 s20, s10, 16
    s_lshl_b32 s21, s10, 12
    s_waitcnt lgkmcnt(0)
    s_add_u32 s16, s8, s3
    s_addc_u32 s17, s9, 0
    s_mov_b32 s18, 0x200000
    s_mov_b32 s19, 0x20000
    s_add_u32 s22, s8, s15
    s_addc_u32 s23, s9, 0
    """)
    AF = 128
    ACC = 64

    def issue(c):
        for i in range(4):
            a(f"s_add_u32 m0, s21, {c*16384 + i*1024}")
            a(f"s_add_u32 s24, s20, {c*262144 + i*16384}")
            a("buffer_load_dwordx4 v4, s[16:19], s24 offen lds")
        for i in range(4):
            r = AF + 16 * c + 4 * i
            a(f"global_load_dwordx4 v[{r}:{r+3}], v5, s[22:23] offset:{i*1024}")
        if c < 7:
            a("v_add_u32 v5, 4096, v5")

    for c in range(7):
        issue(c)
    a.c("tr-read addresses v8..v11 (tile t), rotated so that slot 0 is this wave's stats tile")
    a(f"""
    v_bfe_u32 v2, v1, 2, 2
    v_lshrrev_b32 v3, 5, v1
    v_lshlrev_b32 v6, 11, v3
    v_lshl_add_u32 v6, v2, 8, v6
    v_bfe_u32 v3, v1, 4, 1
    v_lshl_add_u32 v6, v3, 5, v6
    v_and_b32 v3, 3, v1
    v_lshl_add_u32 v6, v3, 3, v6
    v_xor_b32 v2, s10, v2
    """)
    for t in range(4):
        a(f"v_xor_b32 v3, {t}, v2\nv_lshl_add_u32 v{8+t}, v3, 6, v6")
    a("""
    v_mov_b32 v12, 0
    v_mov_b32 v13, 0
    v_mov_b32 v14, 0
    s_mov_b32 s25, 0x3f803f80
    """)
    BB = 32

    def reads(s):
        b = BB + 16 * (s & 1)
        if s == 16:
            for t in range(4):
                a(f"v_add_u32 v{8+t}, 0x10000, v{8+t}")
        o = (s & 15) * 4096
        for t in range(4):
            a(f"ds_read_b64_tr_b16 v[{b+4*t}:{b+4*t+1}], v{8+t} offset:{o}")
            a(f"ds_read_b64_tr_b16 v[{b+4*t+2}:{b+4*t+3}], v{8+t} offset:{o+1024}")

    a("s_waitcnt vmcnt(48)\ns_barrier")
    issue(7)
    reads(0)
    for s in range(32):
        if s + 1 < 32:
            if (s + 1) % 4 == 0:
                c = (s + 1) // 4
                a(f"s_waitcnt vmcnt({8*(7-c)})\ns_barrier")
            reads(s + 1)
            a("s_waitcnt lgkmcnt(8)")
        else:
            a("s_waitcnt lgkmcnt(0)")
        b = BB + 16 * (s & 1)
        af = AF + 4 * s
        for t in range(4):
            cc = "0" if s == 0 else f"v[{ACC+16*t}:{ACC+16*t+15}]"
            a(f"v_mfma_f32_32x32x16_bf16 v[{ACC+16*t}:{ACC+16*t+15}], v[{af}:{af+3}], v[{b+4*t}:{b+4*t+3}], {cc}")
            a(f"v_dot2c_f32_bf16 v12, s25, v{b+t}")
            a(f"v_dot2c_f32_bf16 v13, v{b+t}, v{b+t}")
            a(f"v_dot2c_f32_bf16 v14, s25, v{af+t}")
    a.c("stats: combine halves, finalize, exchange")
    a(f"""
    s_nop 2
    v_mov_b32 v15, v12
    v_mov_b32 v16, v13
    v_permlane32_swap_b32 v12, v15
    v_permlane32_swap_b32 v13, v16
    v_add_f32 v12, v12, v15
    v_add_f32 v13, v13, v16
    v_mov_b32 v15, v12
    v_mov_b32 v16, v13
    s_mov_b32 s26, {f2u(1.0/512)}
    s_mov_b32 s27, {f2u(1e-5)}
    """)
    ln_finalize(a, (12, 15), (13, 16), 17, "s26", "s27")
    a(f"""
    v_cvt_pk_bf16_f32 v12, -v12, -v12
    v_and_b32 v2, 31, v1
    v_lshlrev_b32 v2, 3, v2
    s_lshl_b32 s24, s10, 8
    s_add_u32 s24, s24, {SX}
    v_add_u32 v3, s24, v2
    ds_write_b64 v3, v[12:13]
    """)
    a.c("colsum split into three bf16 terms -> A fragment v[20:23]")
    a(f"""
    v_cvt_pk_bf16_f32 v20, v14, v14
    v_lshlrev_b32 v15, 16, v20
    v_sub_f32 v14, v14, v15
    v_cvt_pk_bf16_f32 v16, v14, v14
    v_lshlrev_b32 v16, 16, v16
    v_sub_f32 v14, v14, v16
    v_cvt_pk_bf16_f32 v20, v15, v16
    v_cvt_pk_bf16_f32 v21, v14, 0
    v_mov_b32 v22, 0
    v_mov_b32 v23, 0
    s_waitcnt lgkmcnt(0)
    s_barrier
    """)
    for t in range(4):
        a(f"s_xor_b32 s24, s10, {t}\ns_lshl_b32 s24, s24, 8\ns_add_u32 s24, s24, {SX}\nv_add_u32 v3, s24, v2")
        a(f"ds_read_b64 v[{32+4*t}:{33+4*t}], v3")
    a(f"s_mov_b32 s26, {f2u(-LOG2E)}")
    a("s_waitcnt lgkmcnt(0)")
    for t in range(4):
        b = 32 + 4 * t
        a(f"v_mov_b32 v{48+2*t}, v{b+1}\nv_mul_f32 v{49+2*t}, s26, v{b+1}")
        a(f"v_mov_b32 v{b+1}, v{b}\nv_mov_b32 v{b+2}, 0\nv_mov_b32 v{b+3}, 0")
    for t in range(4):
        b = 32 + 4 * t
        a(f"v_mfma_f32_32x32x16_bf16 v[{ACC+16*t}:{ACC+16*t+15}], v[20:23], v[{b}:{b+3}], v[{ACC+16*t}:{ACC+16*t+15}]")
    a.c("H store base")
    a(f"""
    s_mul_i32 s24, s11, {2*BLK}
    s_lshl_b32 s28, s13, 12
    s_add_u32 s24, s24, s28
    s_add_u32 s24, s24, {HH}
    s_add_u32 s22, s8, s24
    s_addc_u32 s23, s9, 0
    v_lshlrev_b32 v5, 4, v1
    """)
    T = AF
    for t in range(4):
        a(f"s_xor_b32 s24, s10, {t}\ns_lshr_b32 s28, s24, 1\ns_mul_i32 s28, s28, {BLK}\ns_and_b32 s24, s24, 1\ns_lshl_b32 s24, s24, 10\ns_add_u32 s24, s24, s28")
        a(f"v_add_u32 v{24+t}, s24, v5")
        A0 = ACC + 16 * t
        R = 48 + 2 * t
        TT = T + 32 * t
        for k in range(0, 16, 2):
            a(f"v_pk_mul_f32 v[{TT+k}:{TT+k+1}], v[{A0+k}:{A0+k+1}], v[{R}:{R+1}] op_sel:[0,1] op_sel_hi:[1,1]")
        for k in range(16):
            a(f"v_exp_f32 v{TT+k}, v{TT+k}")
        for k in range(0, 16, 2):
            a(f"v_pk_add_f32 v[{TT+k}:{TT+k+1}], v[{TT+k}:{TT+k+1}], 1.0 op_sel_hi:[1,0]")
            a(f"v_pk_mul_f32 v[{A0+k}:{A0+k+1}], v[{A0+k}:{A0+k+1}], v[{R}:{R+1}] op_sel:[0,0] op_sel_hi:[1,0]")
        for k in range(16):
            a(f"v_rcp_f32 v{TT+k}, v{TT+k}")
        for k in range(0, 16, 2):
            a(f"v_pk_mul_f32 v[{A0+k}:{A0+k+1}], v[{A0+k}:{A0+k+1}], v[{TT+k}:{TT+k+1}]")
        for k in range(0, 16, 2):
            a(f"v_cvt_pk_bf16_f32 v{TT+16+k//2}, v{A0+k}, v{A0+k+1}")
        a(f"global_store_dwordx4 v{24+t}, v[{TT+16}:{TT+19}], s[22:23]")
        a(f"global_store_dwordx4 v{24+t}, v[{TT+20}:{TT+23}], s[22:23] offset:2048")
    a("g1_end:\ns_endpgm")
    return (kd("g1a_kernel", 256, 40, 256) + ".p2align 6\n" + kd("g1b_kernel", 256, 40, 256),
            ("g1a_kernel", 224, 256, LDS), ("g1b_kernel", 224, 256, LDS))


def gen_g2(a):
    LDS = 49152
    head(a, "g2a_kernel")
    a(f"s_mov_b32 s3, {XT1}\ns_mov_b32 s4, 0\ns_branch g2_body")
    head(a, "g2b_kernel")
    a(f"s_mov_b32 s3, {XT3}\ns_mov_b32 s4, 1")
    a("g2_body:")
    a(f"""
    s_cmp_ge_u32 s2, 256
    s_cbranch_scc1 g2_end
    s_load_dwordx2 s[8:9], s[0:1], 96
    s_load_dwordx2 s[6:7], s[0:1], 80
    v_and_b32 v1, 63, v0
    v_lshrrev_b32 v2, 6, v0
    v_readfirstlane_b32 s10, v2
    s_and_b32 s11, s2, 7
    s_lshl_b32 s11, s11, 2
    s_lshr_b32 s12, s2, 6
    s_add_u32 s11, s11, s12
    s_bfe_u32 s12, s2, 0x30003
    """)
    a.c("s11 = l block, s12 = d block, s10 = wave, s13 = mt, s14 = nt")
    a(f"""
    s_lshr_b32 s13, s10, 1
    s_and_b32 s14, s10, 1
    s_mul_i32 s15, s10, {28*2048}
    v_lshlrev_b32 v2, 4, v1
    v_add_u32 v2, s15, v2
    s_mul_i32 s16, s12, {BLK}
    s_add_u32 s16, s16, {W2S}
    s_mul_i32 s17, s11, {BLK}
    s_add_u32 s17, s17, {HH}
    s_lshl_b32 s18, s13, 10
    s_lshl_b32 s19, s14, 10
    s_add_u32 s20, s16, s18
    s_xor_b32 s18, s18, 1024
    s_add_u32 s22, s16, s18
    s_add_u32 s24, s17, s19
    s_xor_b32 s19, s19, 1024
    s_add_u32 s26, s17, s19
    s_waitcnt lgkmcnt(0)
    """)
    for r in (20, 22, 24, 26):
        a(f"s_add_u32 s{r}, s8, s{r}\ns_addc_u32 s{r+1}, s9, 0")
    NS = 16
    ACC = 64

    def issue(k):
        b = 16 * (k % NS)
        o = (k & 1) * 2048
        for i, sb in enumerate((20, 24, 22, 26)):
            a(f"global_load_dwordx4 a[{b+4*i}:{b+4*i+3}], v2, s[{sb}:{sb+1}] offset:{o}")
        if k & 1:
            a("v_add_u32 v2, 4096, v2")

    DEPTH = 15
    for k in range(DEPTH):
        issue(k)
    a(f"""
    s_add_u32 s28, s8, s3
    s_addc_u32 s29, s9, 0
    s_mov_b32 s30, 0x200000
    s_mov_b32 s31, 0x20000
    v_and_b32 v3, 31, v1
    v_lshrrev_b32 v4, 5, v1
    s_lshl_b32 s32, s11, 6
    s_lshl_b32 s33, s14, 5
    s_add_u32 s32, s32, s33
    v_add_u32 v3, s32, v3
    v_lshlrev_b32 v5, 14, v4
    v_lshl_add_u32 v5, v3, 1, v5
    s_lshl_b32 s33, s12, 6
    s_lshl_b32 s34, s13, 5
    s_add_u32 s33, s33, s34
    s_lshl_b32 s34, s33, 12
    """)
    a.c("v3 = l, v4 = half, s33 = d base of tile")
    for r in range(16):
        a(f"v_mov_b32 v{16+r}, 0")
    outstanding = 4 * DEPTH
    res_issued = False
    for k in range(28):
        younger = 4 * (min(28, k + DEPTH) - k - 1) + (16 if res_issued else 0)
        a(f"s_waitcnt vmcnt({younger})")
        b = 16 * (k % NS)
        A0, B0, A1, B1 = b, b + 4, b + 8, b + 12
        for i, (x, y) in enumerate(((A0, B0), (A0, B1), (A1, B0), (A1, B1))):
            cc = "0" if k == 0 else f"v[{ACC+16*i}:{ACC+16*i+15}]"
            a(f"v_mfma_f32_32x32x16_bf16 v[{ACC+16*i}:{ACC+16*i+15}], a[{x}:{x+3}], a[{y}:{y+3}], {cc}")
        if k + DEPTH < 28:
            issue(k + DEPTH)
        if k == 16:
            for g in range(4):
                for r in range(4):
                    a(f"s_add_u32 s35, s34, {(8*g+r)*4096}")
                    a(f"buffer_load_short_d16_hi v{16+4*g+r}, v5, s[28:31], s35 offen")
            res_issued = True
    a.c("cross-wave reduction")
    a("v_lshlrev_b32 v6, 4, v1")
    for i in range(1, 4):
        a(f"s_xor_b32 s35, s10, {i}\ns_mul_i32 s35, s35, 12288\ns_add_u32 s35, s35, {(i-1)*4096}\nv_add_u32 v7, s35, v6")
        for g in range(4):
            r = ACC + 16 * i + 4 * g
            a(f"ds_write_b128 v7, v[{r}:{r+3}] offset:{g*1024}")
    a("s_mul_i32 s35, s10, 12288\nv_add_u32 v7, s35, v6\ns_waitcnt lgkmcnt(0)\ns_barrier")
    for i in range(3):
        for g in range(4):
            r = ACC + 16 * (i + 1) + 4 * g
            a(f"ds_read_b128 v[{r}:{r+3}], v7 offset:{i*4096+g*1024}")
    a("s_waitcnt lgkmcnt(4)")
    for k in range(0, 16, 2):
        a(f"v_pk_add_f32 v[{ACC+k}:{ACC+k+1}], v[{ACC+k}:{ACC+k+1}], v[{ACC+16+k}:{ACC+17+k}]")
    a("s_waitcnt lgkmcnt(0)")
    for k in range(0, 16, 2):
        a(f"v_pk_add_f32 v[{ACC+32+k}:{ACC+33+k}], v[{ACC+32+k}:{ACC+33+k}], v[{ACC+48+k}:{ACC+49+k}]")
    for k in range(0, 16, 2):
        a(f"v_pk_add_f32 v[{ACC+k}:{ACC+k+1}], v[{ACC+k}:{ACC+k+1}], v[{ACC+32+k}:{ACC+33+k}]")
    for k in range(0, 16, 2):
        a(f"v_cvt_pk_bf16_f32 v{32+k//2}, v{ACC+k}, v{ACC+k+1}")
    for k in range(0, 16, 2):
        unpack(a, ACC + k, ACC + k + 1, 32 + k // 2)
    a("s_waitcnt vmcnt(0)")
    for k in range(0, 16, 2):
        a(f"v_pk_add_f32 v[{ACC+k}:{ACC+k+1}], v[{ACC+k}:{ACC+k+1}], v[{16+k}:{17+k}]")
    for k in range(0, 16, 2):
        a(f"v_cvt_pk_bf16_f32 v{32+k//2}, v{ACC+k}, v{ACC+k+1}")
    a("s_cmp_eq_u32 s4, 1\ns_cbranch_scc1 g2_final")
    a(f"""
    s_lshl_b32 s35, s33, 12
    s_add_u32 s35, s35, {XQ2}
    v_lshlrev_b32 v5, 14, v4
    v_lshl_add_u32 v5, v3, 3, v5
    v_add_u32 v5, s35, v5
    """)
    for g in range(4):
        a(f"global_store_dwordx2 v5, v[{32+2*g}:{33+2*g}], s[8:9]")
        if g < 3:
            a("v_add_u32 v5, 0x8000, v5")
    a("s_mov_b32 s35, 0x3f803f80\nv_mov_b32 v8, 0\nv_mov_b32 v9, 0")
    for k in range(8):
        a(f"v_dot2c_f32_bf16 v8, s35, v{32+k}\nv_dot2c_f32_bf16 v9, v{32+k}, v{32+k}")
    a(f"""
    v_lshlrev_b32 v6, 2, v4
    v_lshl_add_u32 v6, v3, 3, v6
    v_add_u32 v6, {ST2}, v6
    s_nop 1
    v_permlane32_swap_b32 v8, v9
    v_add_f32 v8, v8, v9
    global_atomic_add_f32 v6, v8, s[8:9]
    s_endpgm
    g2_final:
    s_lshl_b32 s35, s33, 1
    v_lshlrev_b32 v5, 3, v4
    v_lshl_add_u32 v5, v3, 10, v5
    v_add_u32 v5, s35, v5
    """)
    for g in range(4):
        a(f"global_store_dwordx2 v5, v[{32+2*g}:{33+2*g}], s[6:7] offset:{16*g}")
    a("g2_end:\ns_endpgm")
    return (kd("g2a_kernel", 384, 40, 128) + ".p2align 6\n" + kd("g2b_kernel", 384, 40, 128),
            ("g2a_kernel", 256, 256, LDS), ("g2b_kernel", 256, 256, LDS))


def main():
    out = sys.argv[1] if len(sys.argv) > 1 else f"cdna_kernels/{NAME}.s"
    a = Asm()
    k0, l0 = gen_prep(a)
    kc, c1, c2 = gen_conv(a)
    k1, g1a, g1b = gen_g1(a)
    k2, g2a, g2b = gen_g2(a)
    launches = [l0, c1, g1a, g2a, c2, g1b, g2b]
    hdr = "; generated by work/gen.py (hand-written instruction streams, script-expanded)\n"
    for n, g, b, l in launches:
        hdr += f"; @launch kernel={n} grid=({g},1,1) block=({b},1,1) lds={l}\n"
    txt = hdr + '.amdgcn_target "amdgcn-amd-amdhsa--gfx950"\n.text\n' + a.text()
    txt += '.section .rodata,"a"\n'
    for k in (k0, kc, k1, k2):
        txt += ".p2align 6\n" + k
    open(out, "w").write(txt)


if __name__ == "__main__":
    main()
```

```python
import re

TRANS = ("v_exp_f32", "v_log_f32", "v_rcp_f32", "v_rsq_f32", "v_sqrt_f32", "v_sin_f32", "v_cos_f32",
         "v_rcp_iflag_f32", "v_exp_f16", "v_rcp_f16")

_reg_re = re.compile(r"^(-|abs\(|\|)?([vsa])(\d+|\[(\d+):(\d+)\])\)?\|?$")


def regs_of(op):
    op = op.strip()
    if op in ("vcc", "exec", "m0", "scc", "vcc_lo", "vcc_hi", "exec_lo", "exec_hi"):
        base = op.split("_")[0]
        return {(base, 0)}
    m = _reg_re.match(op)
    if not m:
        return set()
    kind = m.group(2)
    if m.group(4) is not None:
        return {(kind, i) for i in range(int(m.group(4)), int(m.group(5)) + 1)}
    return {(kind, int(m.group(3)))}


def split_ops(rest):
    ops, depth, cur = [], 0, ""
    for ch in rest:
        if ch in "[(":
            depth += 1
        if ch in "])":
            depth -= 1
        if ch == "," and depth == 0:
            ops.append(cur.strip())
            cur = ""
        else:
            cur += ch
    last = cur.strip()
    mods = ""
    if last:
        depth = 0
        idx = len(last)
        for i, ch in enumerate(last):
            if ch in "[(":
                depth += 1
            if ch in "])":
                depth -= 1
            if ch == " " and depth == 0:
                idx = i
                break
        ops.append(last[:idx])
        mods = last[idx:].strip()
    return ops, mods


class Ins:
    def __init__(self, text):
        self.text = text
        t = text.split(";")[0].strip()
        self.label = None
        self.mn = None
        self.kind = None
        self.w = set()
        self.r = set()
        self.states = 1
        self.mods = ""
        self.ops = []
        if not t or t.startswith("."):
            self.kind = "dir"
            self.states = 0
            return
        if t.endswith(":"):
            self.label = t[:-1]
            self.kind = "label"
            self.states = 0
            return
        parts = t.split(None, 1)
        mn = parts[0]
        self.mn = mn
        ops, mods = split_ops(parts[1]) if len(parts) > 1 else ([], "")
        self.ops, self.mods = ops, mods
        R = [regs_of(o) for o in ops]
        U = lambda l: set().union(*l) if l else set()
        if mn == "s_nop":
            self.kind = "nop"
            self.states = int(ops[0], 0) + 1
        elif mn.startswith("v_mfma"):
            self.kind = "mfma"
            self.w = R[0]
            self.A, self.B, self.C = R[1], R[2], R[3]
            self.r = R[1] | R[2] | R[3]
            self.passes = 8 if "32x32" in mn else 4
            assert "bf16" in mn or "f16" in mn
        elif mn.startswith("v_"):
            self.kind = "valu"
            self.dpp = ("_dpp" in mn)
            self.trans = any(mn.startswith(x) for x in TRANS)
            if mn.startswith("v_cmp"):
                self.w = R[0]
                self.r = U(R[1:])
                if mn.startswith("v_cmpx"):
                    self.w |= {("exec", 0)}
            elif mn.startswith("v_permlane") and "swap" in mn:
                self.w = R[0] | R[1]
                self.r = R[0] | R[1]
            elif mn.startswith(("v_add_co", "v_sub_co", "v_subrev_co", "v_addc_co", "v_subb_co")):
                self.w = R[0] | R[1]
                self.r = U(R[2:])
            else:
                self.w = R[0]
                self.r = U(R[1:])
                if mn.startswith(("v_fmac", "v_dot2c", "v_writelane", "v_pk_fmac")) or self.dpp or "sdwa" in mn:
                    self.r |= R[0]
        elif mn.startswith("ds_"):
            self.kind = "ds"
            if mn.startswith(("ds_read", "ds_bpermute", "ds_permute", "ds_swizzle")):
                self.w = R[0]
                self.r = U(R[1:])
                if "d16" in mn:
                    self.r |= R[0]
            else:
                self.r = U(R)
        elif mn.startswith(("buffer_", "global_")):
            self.kind = "vmem"
            lds = (" lds" in (" " + mods)) or ("_lds_" in mn)
            self.lds = lds
            self.store = False
            if mn in ("buffer_wbl2", "buffer_inv"):
                pass
            elif "load" in mn:
                if lds:
                    self.r = U(R) | {("m0", 0)}
                else:
                    self.w = R[0]
                    self.r = U(R[1:])
            else:
                self.store = True
                self.r = U(R)
                if mn.startswith("buffer_"):
                    self.data = R[0]
                elif "atomic" in mn and "sc0" in mods:
                    self.w = R[0]
                    self.data = R[2]
                else:
                    self.data = R[1]
                if mn.startswith("buffer_") and "atomic" in mn and "sc0" in mods:
                    self.w = R[0]
                self.wide = ("x3" in mn or "x4" in mn)
        elif mn.startswith("s_"):
            self.kind = "salu"
            if mn.startswith(("s_cbranch", "s_branch")):
                self.kind = "branch"
                self.target = ops[0]
            elif mn.startswith(("s_cmp", "s_waitcnt", "s_barrier", "s_endpgm", "s_setprio", "s_sleep", "s_bitcmp")):
                self.r = U(R)
            elif mn.startswith(("s_load", "s_buffer_load", "s_memtime", "s_memrealtime")):
                self.kind = "smem"
                self.w = R[0]
                self.r = U(R[1:])
            else:
                self.w = R[0] if R else set()
                self.r = U(R[1:])
                if "saveexec" in mn:
                    self.w |= {("exec", 0)}
        else:
            raise ValueError("unknown instruction: " + text)


def is_s(x):
    return x[0] in ("s", "vcc", "exec")


def need(p, c):
    n = 0
    if p.kind == "valu":
        vw = {x for x in p.w if x[0] in "va" and x[0] != "vcc"}
        vw = {x for x in p.w if x[0] in ("v", "a")}
        sw = {x for x in p.w if is_s(x)}
        if c.kind == "vmem" and sw & c.r:
            n = max(n, 5)
        if c.kind == "valu":
            if c.dpp and vw & c.r:
                n = max(n, 2)
            if c.dpp and ("exec", 0) in p.w:
                n = max(n, 5)
            if sw & c.r:
                n = max(n, 4 if c.mn.startswith(("v_readlane", "v_writelane")) else 2)
            if c.mn.startswith(("v_cndmask", "v_addc", "v_subb")) and ("vcc", 0) in p.w:
                n = max(n, 2)
            if c.mn.startswith(("v_readlane", "v_readfirstlane")) and vw & c.r:
                n = max(n, 1)
            if p.trans and (vw & (c.r | c.w)):
                n = max(n, 1)
            if ("sdwa" in p.mn or "op_sel" in p.mods and not p.mn.startswith("v_pk")) and vw & (c.r | c.w):
                n = max(n, 1)
            if c.mn.startswith("v_permlane") and vw & c.r:
                n = max(n, 2)
            if ("exec", 0) in p.w and c.mn.startswith(("v_readlane", "v_readfirstlane", "v_writelane", "v_permlane")):
                n = max(n, 4)
        if p.mn.startswith("v_dot") and c.kind in ("valu", "mfma", "vmem", "ds") and vw & (c.r | c.w):
            same_c = c.mn == p.mn and not (vw & set().union(*[regs_of(o) for o in c.ops[1:3]]))
            if not same_c:
                n = max(n, 3)
        if c.kind == "mfma":
            if vw & c.r:
                n = max(n, 2)
            if ("exec", 0) in p.w:
                n = max(n, 4)
        if c.kind in ("salu", "smem", "branch") and (sw & c.r or (c.kind == "branch" and "vcc" in c.mn and ("vcc", 0) in p.w)):
            n = max(n, 2)
    if p.kind == "salu":
        if ("m0", 0) in p.w and c.kind == "vmem" and c.lds:
            n = max(n, 1)
    if p.kind == "vmem" and p.store and p.wide:
        if p.data & c.w:
            n = max(n, 2)
    if p.kind == "mfma":
        hi = p.passes == 8
        if c.kind == "mfma":
            if p.w & (c.A | c.B):
                n = max(n, 12 if hi else 8)
            if p.w & c.C and not (p.w == c.C and p.passes == c.passes):
                n = max(n, 10 if hi else 6)
            if p.w & c.w and not (p.w == c.C and p.passes == c.passes):
                n = max(n, 12 if hi else 8)
        elif c.kind in ("valu", "vmem", "ds"):
            if p.w & (c.r | c.w):
                n = max(n, 12 if hi else 8)
            if c.kind == "valu" and p.C & c.w:
                n = max(n, 7 if hi else 3)
    return n


WINDOW = 14


def deficit(window, c):
    dist = 0
    d = 0
    for p in reversed(window):
        if p.kind in ("dir", "label"):
            continue
        k = need(p, c)
        if k > dist:
            d = max(d, k - dist)
        dist += p.states
        if dist > WINDOW:
            break
    return d


def nops(n):
    out = []
    while n > 0:
        k = min(n, 16)
        out.append(Ins("    s_nop %d" % (k - 1)))
        n -= k
    return out


def pad_hazards(lines):
    ins = [Ins(l) for l in lines]
    out = []
    for c in ins:
        if c.kind not in ("dir", "label", "nop"):
            d = deficit(out[-40:], c)
            if d:
                out += nops(d)
        out.append(c)
    changed = True
    while changed:
        changed = False
        labels = {x.label: i for i, x in enumerate(out) if x.kind == "label"}
        for i, b in enumerate(out):
            if b.kind != "branch":
                continue
            t = labels[b.target]
            win = out[max(0, i - 40): i + 1]
            worst = 0
            seq = list(win)
            dist = 0
            for c in out[t: t + 40]:
                if c.kind in ("dir", "label"):
                    continue
                if c.kind != "nop":
                    worst = max(worst, deficit(seq, c))
                seq.append(c)
                dist += c.states
                if dist > WINDOW or c.mn in ("s_endpgm", "s_branch"):
                    break
            if worst:
                out[i:i] = nops(worst)
                changed = True
                break
    return [x.text for x in out]


class Asm:
    def __init__(self):
        self.lines = []

    def __call__(self, s):
        for l in s.strip("\n").split("\n"):
            l = l.strip()
            if not l:
                continue
            if l.endswith(":") or l.startswith("."):
                self.lines.append(l)
            else:
                self.lines.append("    " + l)

    def c(self, s):
        self.lines.append("    ; " + s)

    def text(self):
        return "\n".join(pad_hazards(self.lines)) + "\n"


def vr(a, n=1):
    return "v%d" % a if n == 1 else "v[%d:%d]" % (a, a + n - 1)


def ar(a, n=1):
    return "a%d" % a if n == 1 else "a[%d:%d]" % (a, a + n - 1)


def sr(a, n=1):
    return "s%d" % a if n == 1 else "s[%d:%d]" % (a, a + n - 1)


def f2u(x):
    import struct
    return "0x%08x" % struct.unpack("<I", struct.pack("<f", x))[0]


class Vm:
    def __init__(self, a):
        self.a = a
        self.ops = []
        self.done = 0

    def issue(self, text, tag):
        assert len(self.ops) - self.done < 63, "too many outstanding"
        self.a(text)
        self.ops.append(tag)

    def wait(self, *tags):
        last = max(i for i, t in enumerate(self.ops) if t in tags)
        if last < self.done:
            return
        n = len(self.ops) - 1 - last
        self.a(f"s_waitcnt vmcnt({n})")
        self.done = last + 1

    def wait_all(self):
        self.a("s_waitcnt vmcnt(0)")
        self.done = len(self.ops)
```

```python
import sys, math, os
from asmlib import *

NAME = "interleave_layers__ssm_conv_s4d__dense_activation_silu__prompt"

XQ0 = 0x0000000
XT1 = 0x0200000
XQ2 = 0x0400000
XT3 = 0x0600000
KR = 0x0800000
W1S = 0x0A00000
W2S = 0x0C00000
HH = 0x0E00000
H2 = 0x1800000
ST0 = 0x1600000
KINV = 0x1608000
CS = 0x1610000
ZB = 0x1620000
ST2 = ZB
GR1 = ZB + 0x4000
GR2 = ZB + 0x8000
CN1 = ZB + 0xC000
CN2 = ZB + 0xE000
LOG2E = 1.4426950408889634
BLK = 229376


DIAG = False
DG = 0x4000000
STAMP0 = 74


class Stamper:
    def __init__(self, a):
        self.a, self.n = a, 0

    def start(self):
        if not DIAG:
            return
        self.a(f"s_memrealtime s[72:73]\ns_memtime s[{STAMP0}:{STAMP0+1}]\ns_waitcnt lgkmcnt(0)")
        self.n = 1

    def __call__(self):
        if not DIAG:
            return
        r = STAMP0 + 2 * self.n
        self.a(f"s_memtime s[{r}:{r+1}]\ns_waitcnt lgkmcnt(0)")
        self.n += 1
        assert r + 1 < 100

    def dump(self, slot_sgpr, wave, ws):
        if not DIAG:
            return
        a = self.a
        self()
        a(f"s_memrealtime s[100:101]\ns_waitcnt vmcnt(0) lgkmcnt(0)")
        a(f"""
        s_lshl_b32 s73, s{slot_sgpr}, 8
        s_add_u32 s73, s73, s2
        s_lshl_b32 s73, s73, 3
        s_add_u32 s73, s73, s{wave}
        s_lshl_b32 s73, s73, 6
        s_add_u32 s73, s73, {DG}
        v_mov_b32 v0, s73
        s_mov_b64 exec, 1
        v_mov_b32 v1, s72
        global_store_dword v0, v1, s[{ws}:{ws+1}]
        v_mov_b32 v1, s100
        global_store_dword v0, v1, s[{ws}:{ws+1}] offset:4
        """)
        for i in range(self.n):
            a(f"v_mov_b32 v1, s{STAMP0+2*i}\nglobal_store_dword v0, v1, s[{ws}:{ws+1}] offset:{8+4*i}")


def kd(name, vgpr, sgpr, accum):
    if DIAG:
        sgpr = 102
    return f""".amdhsa_kernel {name}
  .amdhsa_next_free_vgpr {vgpr}
  .amdhsa_next_free_sgpr {sgpr}
  .amdhsa_accum_offset {accum}
  .amdhsa_group_segment_fixed_size 0
  .amdhsa_kernarg_size 104
  .amdhsa_user_sgpr_count 2
  .amdhsa_user_sgpr_kernarg_segment_ptr 1
  .amdhsa_system_sgpr_workgroup_id_x 1
.end_amdhsa_kernel
"""


def head(a, name):
    a(f".globl {name}\n.p2align 8\n.type {name},@function\n{name}:")


def addr64(a, d, base, off):
    a(f"s_add_u32 s{d}, s{base}, {off}\ns_addc_u32 s{d+1}, s{base+1}, 0")


def unpack(a, lo, hi, src):
    a(f"v_lshlrev_b32 v{lo}, 16, v{src}\nv_and_b32 v{hi}, 0xffff0000, v{src}")


def wave_reduce(a, op, regs):
    for m in ("quad_perm:[1,0,3,2] row_mask:0xf", "quad_perm:[2,3,0,1] row_mask:0xf",
              "row_half_mirror row_mask:0xf", "row_mirror row_mask:0xf",
              "row_bcast:15 row_mask:0xa", "row_bcast:31 row_mask:0xc"):
        for r in regs:
            a(f"{op}_dpp v{r}, v{r}, v{r} {m} bank_mask:0xf")


def gen_prep(a):
    name = "prep_kernel"
    head(a, name)
    a(f"""
    s_cmp_ge_u32 s2, 256
    s_cbranch_scc1 prep_end
    """)
    st = Stamper(a)
    st.start()
    a(f"""
    s_load_dwordx16 s[4:19], s[0:1], 0
    s_load_dwordx4 s[20:23], s[0:1], 64
    s_load_dwordx2 s[24:25], s[0:1], 96
    v_and_b32 v1, 63, v0
    v_lshrrev_b32 v2, 6, v0
    v_readfirstlane_b32 s26, v2
    s_and_b32 s27, s2, 7
    s_lshl_b32 s27, s27, 5
    s_lshr_b32 s28, s2, 3
    s_or_b32 s27, s27, s28
    s_lshr_b32 s29, s26, 2
    s_lshl_b32 s28, s27, 1
    s_add_u32 s28, s28, s29
    s_lshl_b32 s30, s28, 8
    v_lshlrev_b32 v4, 2, v1
    v_add_u32 v3, s30, v4
    s_lshl_b32 s31, s27, 2
    """)
    a.c("s26=wave s27=cp s28=ch s29=ch&1 v1=lane v4=lane*4")
    a(f"""
    s_lshr_b32 s32, s2, 3
    s_and_b32 s33, s2, 7
    s_lshl_b32 s34, s32, 16
    s_lshl_b32 s35, s33, 7
    s_add_u32 s34, s34, s35
    s_lshl_b32 s35, s26, 4
    s_add_u32 s34, s34, s35
    v_lshlrev_b32 v5, 10, v1
    v_add_u32 v5, s34, v5
    s_lshl_b32 s35, s2, 3
    s_add_u32 s35, s35, s26
    s_lshl_b32 s36, s35, 10
    v_lshlrev_b32 v6, 4, v1
    v_add_u32 v6, s36, v6
    s_waitcnt lgkmcnt(0)
    s_load_dword s37, s[14:15], s31
    global_load_dword v10, v3, s[6:7]
    global_load_dword v11, v3, s[8:9]
    global_load_dword v12, v3, s[10:11]
    global_load_dword v13, v3, s[12:13]
    global_load_dwordx4 v[14:17], v5, s[4:5]
    global_load_dwordx4 v[18:21], v6, s[4:5]
    """)
    a.c("weight shuffle task: s40..43 SRD, s44 base, s45 stride1, s46 stride4, s47 dst, s48/s49 lane strides")
    a(f"""
    s_mul_i32 s38, s2, 7
    s_add_u32 s38, s38, s26
    s_mov_b32 s42, 1835008
    s_mov_b32 s43, 0x20000
    s_cmp_ge_u32 s38, 896
    s_cbranch_scc1 prep_w2
    s_mov_b32 s40, s20
    s_mov_b32 s41, s21
    s_mul_hi_u32 s39, s38, 306783379
    s_mul_i32 s44, s39, 14
    s_sub_u32 s50, s38, s44
    s_mul_i32 s44, s39, {8*3584}
    s_lshl_b32 s45, s50, 8
    s_add_u32 s44, s44, s45
    s_mov_b32 s45, 3584
    s_mov_b32 s46, {4*3584}
    s_lshl_b32 s47, s50, 17
    s_lshl_b32 s51, s39, 9
    s_add_u32 s47, s47, s51
    s_add_u32 s47, s47, {W1S}
    s_mov_b32 s48, 65536
    s_mov_b32 s49, 32768
    s_branch prep_wj
    prep_w2:
    s_mov_b32 s40, s22
    s_mov_b32 s41, s23
    s_sub_u32 s38, s38, 896
    s_lshr_b32 s39, s38, 2
    s_and_b32 s50, s38, 3
    s_lshr_b32 s51, s39, 1
    s_and_b32 s52, s39, 1
    s_lshl_b32 s44, s51, 14
    s_lshl_b32 s45, s52, 12
    s_add_u32 s44, s44, s45
    s_lshl_b32 s45, s50, 8
    s_add_u32 s44, s44, s45
    s_mov_b32 s45, 1024
    s_mov_b32 s46, 8192
    s_mul_i32 s47, s50, {2*BLK}
    s_lshl_b32 s53, s51, 11
    s_add_u32 s47, s47, s53
    s_lshl_b32 s53, s52, 9
    s_add_u32 s47, s47, s53
    s_add_u32 s47, s47, {W2S}
    s_mov_b32 s48, {BLK}
    s_mov_b32 s49, 1024
    prep_wj:
    s_cmp_eq_u32 s26, 7
    s_cbranch_scc1 prep_noload
    s_add_u32 s54, s44, s46
    """)
    for j in range(4):
        a(f"buffer_load_dword v{22+j}, v4, s[40:43], s44 offen")
        a(f"buffer_load_dword v{26+j}, v4, s[40:43], s54 offen")
        if j < 3:
            a("s_add_u32 s44, s44, s45\ns_add_u32 s54, s54, s45")
    a("prep_noload:")
    a.c("v30..37: gather addresses; v38:39 = (pc,pf); v40..: T write addrs")
    TB = 16384
    TS = 12288
    a(f"""
    v_and_b32 v7, 255, v0
    v_lshlrev_b32 v8, 3, v7
    v_sub_u32 v8, 2047, v8
    s_mul_i32 s55, s29, {4*TS}
    s_add_u32 s55, s55, {TB}
    """)
    for e in range(0, 8, 2):
        a(f"""
        v_subrev_u32 v44, {e}, v8
        v_subrev_u32 v45, {e+1}, v8
        v_cvt_f32_u32 v44, v44
        v_cvt_f32_u32 v45, v45
        v_cvt_pk_bf16_f32 v46, v44, v45
        """)
        unpack(a, 44, 45, 46)
        a("v_cvt_u32_f32 v44, v44\nv_cvt_u32_f32 v45, v45")
        for k in range(2):
            p = 44 + k
            a(f"""
            v_lshrrev_b32 v46, 8, v{p}
            v_and_b32 v47, 7, v{p}
            v_lshl_or_b32 v46, v46, 3, v47
            v_bfe_u32 v47, v{p}, 3, 5
            v_lshl_or_b32 v46, v46, 5, v47
            v_lshl_add_u32 v{30+e+k}, v46, 2, s55
            """)
    a(f"""
    v_and_b32 v44, 31, v1
    v_lshlrev_b32 v45, 3, v44
    v_cvt_f32_u32 v39, v45
    v_lshlrev_b32 v45, 1, v44
    v_add_u32 v45, 240, v45
    v_cmp_gt_u32 vcc, 8, v44
    v_cndmask_b32 v46, v45, v44, vcc
    v_and_b32 v45, 1, v44
    v_lshlrev_b32 v45, 2, v45
    v_and_b32 v47, 2, v44
    v_lshl_add_u32 v45, v47, 7, v45
    v_add_u32 v45, 512, v45
    v_cmp_gt_u32 vcc, 12, v44
    v_cndmask_b32 v46, v45, v46, vcc
    v_lshlrev_b32 v45, 8, v44
    v_subrev_u32 v45, 3072, v45
    v_cmp_gt_u32 vcc, 16, v44
    v_cndmask_b32 v46, v45, v46, vcc
    v_cvt_f32_u32 v38, v46
    """)
    a(f"""
    s_mul_i32 s56, s26, {TS}
    s_add_u32 s56, s56, {TB}
    v_lshrrev_b32 v45, 5, v1
    v_lshl_add_u32 v44, v44, 2, s56
    v_lshl_add_u32 v40, v45, 9, v44
    v_lshl_add_u32 v48, v45, 12, v44
    v_lshl_add_u32 v41, v45, 10, v44
    v_lshlrev_b32 v46, 8, v45
    v_add_u32 v46, 256, v46
    v_add_u32 v42, v41, v46
    v_add_u32 v43, v42, v46
    v_add_u32 v49, v43, v46
    """)
    a.c("v40: g0 base (off r*128); v41,v42,v43,v49: g1 r=0..3 (off 1024); v48: g2 base (off 4096+r*1024)")
    a(f"""
    s_lshl_b32 s57, s26, 11
    v_lshl_add_u32 v50, v1, 5, s57
    s_and_b32 s58, s26, 3
    s_lshl_b32 s58, s58, 9
    s_add_u32 s58, s58, s57
    v_lshl_add_u32 v51, v45, 6, s58
    """)
    st()
    a("s_waitcnt vmcnt(0) lgkmcnt(0)")
    st()
    a(f"""
    s_lshl_b32 s59, s29, 4
    s_lshr_b32 s37, s37, s59
    s_lshl_b32 s37, s37, 16
    s_mov_b32 s60, {f2u(LOG2E)}
    v_mov_b32 v52, s60
    v_mul_f32 v52, s37, v52
    """)
    unpack(a, 54, 58, 10)
    a(f"""
    v_mul_f32 v54, s60, v54
    v_mul_f32 v58, s60, v58
    v_exp_f32 v52, v52
    v_exp_f32 v54, v54
    v_exp_f32 v58, v58
    """)
    unpack(a, 55, 59, 11)
    unpack(a, 56, 60, 12)
    unpack(a, 57, 61, 13)
    a(f"""
    v_cvt_pk_bf16_f32 v52, v52, v52
    v_cvt_pk_bf16_f32 v53, v54, v58
    v_lshlrev_b32 v52, 16, v52
    """)
    unpack(a, 54, 58, 53)
    for r in range(54, 62):
        a(f"v_mul_f32 v{r}, v52, v{r}")
    a(f"""
    v_max3_f32 v53, abs(v56), abs(v57), abs(v60)
    v_max_f32 v53, abs(v61), v53
    s_mov_b32 s61, {f2u(-LOG2E)}
    v_mul_f32 v54, s61, v54
    v_mul_f32 v58, s61, v58
    v_mul_f32 v55, 0.15915494, v55
    v_mul_f32 v59, 0.15915494, v59
    """.replace("v_max_f32 v53, abs(v61), v53", "v_max_f32_e64 v53, abs(v61), v53"))
    wave_reduce(a, "v_max_f32", [53])
    a(f"""
    v_readlane_b32 s62, v53, 63
    v_frexp_exp_i32_f32 v53, s62
    s_movk_i32 s63, 110
    v_med3_i32 v53, v53, s63, -100
    v_sub_u32 v62, 7, v53
    v_subrev_u32 v63, 6, v53
    v_ldexp_f32 v62, 1.0, v62
    v_ldexp_f32 v63, 1.0, v63
    v_mul_f32 v56, v62, v56
    v_mul_f32 v57, v62, v57
    v_mul_f32 v60, v62, v60
    v_mul_f32 v61, v62, v61
    """.replace("v_med3_i32 v53, v53, s63, -100", "v_min_i32 v53, s63, v53\nv_max_i32 v53, -100, v53"))
    a("ds_write_b128 v50, v[54:57]\nds_write_b128 v50, v[58:61] offset:16")
    a(f"""
    s_lshl_b32 s64, s33, 4
    s_lshl_b32 s65, s26, 1
    s_add_u32 s64, s64, s65
    s_lshl_b32 s64, s64, 14
    s_lshl_b32 s65, s32, 9
    s_add_u32 s64, s64, s65
    s_add_u32 s64, s64, {XQ0}
    v_lshl_add_u32 v5, v1, 3, s64
    v_add_u32 v6, 16384, v5
    global_store_dwordx2 v5, v[14:15], s[24:25]
    global_store_dwordx2 v6, v[16:17], s[24:25]
    """)
    a("s_waitcnt lgkmcnt(0)")
    for s in range(4):
        for i in range(4):
            a(f"ds_read_b128 v[{64+16*s+4*i}:{64+16*s+4*i+3}], v51 offset:{(8*s+i)*16}")
    a(f"""
    s_mov_b32 s66, 0x3f803f80
    v_mov_b32 v8, 0
    v_mov_b32 v9, 0
    """)
    for r in range(18, 22):
        a(f"v_dot2c_f32_bf16 v8, s66, v{r}\nv_dot2c_f32_bf16 v9, v{r}, v{r}")
    a("s_nop 2")
    wave_reduce(a, "v_add_f32", [8, 9])
    a(f"""
    s_lshl_b32 s65, s35, 3
    s_add_u32 s65, s65, {ST0}
    v_mov_b32 v5, s65
    s_lshl_b32 s65, s28, 2
    s_add_u32 s65, s65, {KINV}
    v_mov_b32 v6, s65
    s_lshl_b64 exec, 1, 63
    global_store_dwordx2 v5, v[8:9], s[24:25]
    global_store_dword v6, v63, s[24:25]
    s_mov_b64 exec, -1
    s_cmp_eq_u32 s26, 7
    s_cbranch_scc1 prep_zero
    s_mov_b32 s67, 0x05040100
    s_mov_b32 s68, 0x07060302
    """)
    for j in range(4):
        a(f"v_perm_b32 v{14+j}, v{22+2*j+1}, v{22+2*j}, s67")
        a(f"v_perm_b32 v{18+j}, v{22+2*j+1}, v{22+2*j}, s68")
    a(f"""
    v_lshrrev_b32 v5, 5, v1
    v_mul_lo_u32 v5, v5, s48
    v_bfe_u32 v6, v1, 4, 1
    v_mul_lo_u32 v6, v6, s49
    v_and_b32 v7, 15, v1
    v_lshlrev_b32 v7, 5, v7
    v_add3_u32 v5, v5, v6, v7
    v_add_u32 v5, s47, v5
    global_store_dwordx4 v5, v[14:17], s[24:25]
    global_store_dwordx4 v5, v[18:21], s[24:25] offset:16
    s_branch prep_eval
    prep_zero:
    s_lshl_b32 s65, s2, 8
    s_add_u32 s65, s65, {ZB}
    v_add_u32 v5, s65, v4
    v_mov_b32 v6, 0
    global_store_dword v5, v6, s[24:25]
    prep_eval:
    """)
    st()
    ACC = 128
    AF, BF = 144, 148
    T0 = 152
    for s in range(4):
        a(f"s_waitcnt lgkmcnt({min(15, 12 - 4*s)})")
        P = lambda i: 64 + 16 * s + 4 * i
        T = lambda i: T0 + 8 * i
        for i in range(4):
            a(f"v_pk_mul_f32 v[{T(i)}:{T(i)+1}], v[38:39], v[{P(i)}:{P(i)+1}] op_sel:[0,0] op_sel_hi:[1,0]")
            a(f"v_pk_mul_f32 v[{T(i)+2}:{T(i)+3}], v[38:39], v[{P(i)}:{P(i)+1}] op_sel:[0,1] op_sel_hi:[1,1]")
        for i in range(4):
            a(f"v_fract_f32 v{T(i)+2}, v{T(i)+2}\nv_fract_f32 v{T(i)+3}, v{T(i)+3}")
        for i in range(4):
            a(f"v_exp_f32 v{T(i)}, v{T(i)}\nv_exp_f32 v{T(i)+1}, v{T(i)+1}")
        for i in range(4):
            a(f"v_cos_f32 v{T(i)+4}, v{T(i)+2}\nv_sin_f32 v{T(i)+5}, v{T(i)+2}")
            a(f"v_cos_f32 v{T(i)+6}, v{T(i)+3}\nv_sin_f32 v{T(i)+7}, v{T(i)+3}")
        for i in range(4):
            a(f"v_pk_mul_f32 v[{T(i)+2}:{T(i)+3}], v[{T(i)+4}:{T(i)+5}], v[{P(i)+2}:{P(i)+3}] op_sel:[0,0] op_sel_hi:[1,0]")
            a(f"v_pk_mul_f32 v[{T(i)+6}:{T(i)+7}], v[{T(i)+6}:{T(i)+7}], v[{T(i)}:{T(i)+1}] op_sel:[0,1] op_sel_hi:[1,1]")
        for i in range(4):
            a(f"v_pk_fma_f32 v[{T(i)+2}:{T(i)+3}], v[{T(i)+4}:{T(i)+5}], v[{P(i)+2}:{P(i)+3}], v[{T(i)+2}:{T(i)+3}] op_sel:[1,1,0] op_sel_hi:[0,1,1] neg_lo:[0,1,0]")
            a(f"v_cvt_pk_f16_f32 v{BF+i}, v{T(i)+6}, v{T(i)+7}")
        for i in range(4):
            a(f"v_pk_mul_f32 v[{T(i)+2}:{T(i)+3}], v[{T(i)+2}:{T(i)+3}], v[{T(i)}:{T(i)+1}] op_sel:[0,0] op_sel_hi:[1,0] neg_hi:[0,1]")
        for i in range(4):
            a(f"v_cvt_pk_f16_f32 v{AF+i}, v{T(i)+2}, v{T(i)+3}")
        c = "0" if s == 0 else f"v[{ACC}:{ACC+15}]"
        a(f"v_mfma_f32_32x32x16_f16 v[{ACC}:{ACC+15}], v[{AF}:{AF+3}], v[{BF}:{BF+3}], {c}")
    st()
    for r in range(4):
        a(f"ds_write_b32 v40, v{ACC+r} offset:{r*128}")
    for r, ad in enumerate((41, 42, 43, 49)):
        a(f"ds_write_b32 v{ad}, v{ACC+4+r} offset:1024")
    for r in range(4):
        a(f"ds_write_b32 v48, v{ACC+8+r} offset:{4096+r*1024}")
    a("s_waitcnt lgkmcnt(0)\ns_barrier")
    st()
    for q in range(4):
        for e in range(8):
            a(f"ds_read_b32 v{64+8*q+e}, v{30+e} offset:{q*TS}")
    a(f"""
    s_lshl_b32 s65, s28, 12
    s_add_u32 s65, s65, {KR}
    v_and_b32 v7, 255, v0
    v_lshl_add_u32 v5, v7, 4, s65
    s_waitcnt lgkmcnt(0)
    """)
    for e in range(0, 8, 2):
        a(f"v_pk_add_f32 v[{64+e}:{65+e}], v[{64+e}:{65+e}], v[{72+e}:{73+e}]")
        a(f"v_pk_add_f32 v[{80+e}:{81+e}], v[{80+e}:{81+e}], v[{88+e}:{89+e}]")
    for e in range(0, 8, 2):
        a(f"v_pk_add_f32 v[{64+e}:{65+e}], v[{64+e}:{65+e}], v[{80+e}:{81+e}]")
    for e in range(0, 8, 2):
        a(f"v_cvt_pk_f16_f32 v{96+e//2}, v{64+e}, v{65+e}")
    a("global_store_dwordx4 v5, v[96:99], s[24:25]")
    if DIAG:
        a("s_mov_b32 s71, 0")
    st.dump(71, 26, 24)
    a("prep_end:\ns_endpgm")
    return kd(name, 184, 72, 184), (name, 256, 512, 16384 + 8 * TS)


def ln_finalize(a, s1, s2, t, c512, eps):
    (a1, b1), (a2, b2) = s1, s2
    a(f"""
    v_mul_f32 v{a1}, {c512}, v{a1}
    v_mul_f32 v{b1}, {c512}, v{b1}
    v_mul_f32 v{a2}, {c512}, v{a2}
    v_mul_f32 v{b2}, {c512}, v{b2}
    v_fma_f32 v{a2}, -v{a1}, v{a1}, v{a2}
    v_fma_f32 v{b2}, -v{b1}, v{b1}, v{b2}
    v_max_f32 v{a2}, 0, v{a2}
    v_max_f32 v{b2}, 0, v{b2}
    v_cvt_pk_bf16_f32 v{t}, v{a1}, v{b1}
    """)
    unpack(a, a1, b1, t)
    a(f"v_cvt_pk_bf16_f32 v{t}, v{a2}, v{b2}")
    unpack(a, a2, b2, t)
    a(f"v_add_f32 v{a2}, {eps}, v{a2}\nv_add_f32 v{b2}, {eps}, v{b2}")
    a(f"v_cvt_pk_bf16_f32 v{t}, v{a2}, v{b2}")
    unpack(a, a2, b2, t)
    a(f"v_sqrt_f32 v{a2}, v{a2}\nv_sqrt_f32 v{b2}, v{b2}")
    a(f"v_cvt_pk_bf16_f32 v{t}, v{a2}, v{b2}")
    unpack(a, a2, b2, t)
    a(f"v_rcp_f32 v{a2}, v{a2}\nv_rcp_f32 v{b2}, v{b2}")


def gen_conv(a):
    KCS = 4160
    NP2 = int(os.environ.get('NP2', '0'))
    KC = lambda c: c * 4 * KCS
    UB = 8 * KCS
    US = 7680
    YB = UB + 2 * US
    YS = 9216
    LDS = YB + 4 * YS
    head(a, "conv1_kernel")
    a(f"s_mov_b32 s3, {XQ0}\ns_mov_b32 s4, {ST0}\ns_mov_b32 s5, {XT1}\ns_mov_b32 s39, 1\ns_branch conv_body")
    head(a, "conv2_kernel")
    a(f"s_mov_b32 s3, {XQ2}\ns_mov_b32 s4, {ST2}\ns_mov_b32 s5, {XT3}\ns_mov_b32 s39, 3")
    a("conv_body:")
    a(f"""
    s_cmp_ge_u32 s2, 256
    s_cbranch_scc1 conv_end
    """)
    st = Stamper(a)
    st.start()
    a(f"""
    s_load_dwordx2 s[6:7], s[0:1], 48
    s_load_dwordx2 s[8:9], s[0:1], 96
    v_and_b32 v1, 63, v0
    v_lshrrev_b32 v2, 6, v0
    v_readfirstlane_b32 s10, v2
    s_and_b32 s11, s2, 7
    s_lshl_b32 s11, s11, 5
    s_lshr_b32 s12, s2, 3
    s_or_b32 s11, s11, s12
    s_lshr_b32 s12, s11, 1
    s_lshl_b32 s12, s12, 14
    s_and_b32 s13, s11, 1
    s_lshl_b32 s13, s13, 2
    s_add_u32 s12, s12, s13
    s_add_u32 s12, s12, s3
    v_lshlrev_b32 v3, 5, v0
    v_add_u32 v4, s12, v3
    v_add_u32 v5, s4, v3
    s_lshl_b32 s13, s11, 13
    s_add_u32 s13, s13, {KR}
    v_lshl_add_u32 v6, v0, 4, s13
    s_lshl_b32 s14, s11, 2
    s_lshl_b32 s15, s11, 3
    s_add_u32 s15, s15, {KINV}
    s_waitcnt lgkmcnt(0)
    global_load_dwordx4 v[24:27], v5, s[8:9]
    global_load_dwordx4 v[28:31], v5, s[8:9] offset:16
    global_load_dwordx4 v[16:19], v4, s[8:9]
    global_load_dwordx4 v[20:23], v4, s[8:9] offset:16
    global_load_dwordx4 v[48:51], v6, s[8:9]
    global_load_dwordx2 v[52:53], v6, s[8:9] offset:16
    s_load_dword s16, s[6:7], s14
    s_load_dwordx2 s[18:19], s[8:9], s15
    """)
    a.c("zero fills: U pad rows (2*2560 B) and K tails")
    a(f"""
    v_mov_b32 v8, 0
    v_mov_b32 v9, 0
    v_mov_b32 v10, 0
    v_mov_b32 v11, 0
    v_lshlrev_b32 v7, 4, v0
    v_add_u32 v12, {UB}, v7
    v_cmp_gt_u32 vcc, 160, v0
    s_and_saveexec_b64 s[20:21], vcc
    ds_write_b128 v12, v[8:11]
    ds_write_b128 v12, v[8:11] offset:{US}
    s_mov_b64 exec, s[20:21]
    v_lshrrev_b32 v12, 2, v0
    v_mul_u32_u24 v12, {KCS}, v12
    v_and_b32 v13, 3, v0
    v_lshl_add_u32 v12, v13, 4, v12
    v_cmp_gt_u32 vcc, 32, v0
    s_and_saveexec_b64 s[20:21], vcc
    ds_write_b128 v12, v[8:11] offset:4096
    s_mov_b64 exec, s[20:21]
    """)
    a.c("addresses: v12 = K copy write, v13 = U write, v14 = Y read, v15 = out store")
    a(f"""
    v_and_b32 v7, 255, v0
    s_lshr_b32 s17, s10, 2
    s_mul_i32 s17, s17, {4*KCS}
    v_lshl_add_u32 v12, v7, 4, s17
    v_cmp_eq_u32 s[22:23], 255, v7
    v_lshrrev_b32 v7, 3, v0
    v_and_b32 v2, 7, v0
    v_mul_u32_u24 v13, 80, v7
    v_lshl_add_u32 v13, v2, 3, v13
    v_add_u32 v13, {UB + 32*80}, v13
    v_mul_u32_u24 v14, 144, v7
    v_lshl_add_u32 v14, v2, 4, v14
    v_add_u32 v14, {YB}, v14
    s_lshl_b32 s13, s11, 13
    s_add_u32 s13, s13, s5
    v_lshl_add_u32 v15, v0, 3, s13
    """.replace("v_cmp_eq_u32 s[22:23], 255, v7", "s_movk_i32 s24, 255\nv_cmp_eq_u32 s[22:23], s24, v7"))
    a.c("MFMA operand addresses: v2 = A, v3 = B, v4 = Y write")
    a(f"""
    v_and_b32 v7, 31, v1
    v_lshrrev_b32 v5, 5, v1
    s_and_b32 s24, s10, 1
    s_bfe_u32 s25, s10, 0x10001
    v_and_b32 v2, 3, v7
    v_sub_u32 v2, 3, v2
    v_mul_u32_u24 v2, {KCS}, v2
    v_and_b32 v3, 28, v7
    v_lshlrev_b32 v3, 1, v3
    v_sub_u32 v2, v2, v3
    v_lshl_add_u32 v2, v5, 4, v2
    s_mul_i32 s26, s25, {4*KCS}
    s_lshl_b32 s27, s24, 5
    s_add_u32 s26, s26, s27
    s_add_u32 s26, s26, 56
    v_add_u32 v2, s26, v2
    v_mul_u32_u24 v3, 80, v7
    v_lshl_add_u32 v3, v5, 4, v3
    s_mul_i32 s26, s25, {US}
    s_add_u32 s26, s26, s27
    s_add_u32 s26, s26, {UB + 80}
    v_add_u32 v3, s26, v3
    v_mul_u32_u24 v4, 144, v7
    v_lshl_add_u32 v4, v5, 4, v4
    s_mul_i32 s26, s10, {YS}
    s_add_u32 s26, s26, {YB}
    v_add_u32 v4, s26, v4
    """)
    a.c("LN stats")
    st()
    a(f"s_mov_b32 s26, {f2u(1.0/512)}\ns_mov_b32 s27, {f2u(1e-5)}\ns_waitcnt vmcnt(4)")
    st()
    ln_finalize(a, (24, 26), (25, 27), 60, "s26", "s27")
    ln_finalize(a, (28, 30), (29, 31), 61, "s26", "s27")
    a.c("K copies")
    a("s_waitcnt vmcnt(0)")
    a("v_cndmask_b32 v52, v52, 0, s[22:23]\nv_cndmask_b32 v53, v53, 0, s[22:23]")
    a("ds_write_b128 v12, v[48:51]")
    for i in range(4):
        a(f"v_alignbit_b32 v{56+i}, v{49+i}, v{48+i}, 16")
    a(f"ds_write_b128 v12, v[56:59] offset:{KCS}")
    for i in range(4):
        a(f"v_alignbit_b32 v{60+i}, v{50+i}, v{49+i}, 16")
    a(f"ds_write_b128 v12, v[60:63] offset:{3*KCS}")
    for i in range(4):
        a(f"v_mov_b32 v{44+i}, v{49+i}")
    a(f"ds_write_b128 v12, v[44:47] offset:{2*KCS}")
    a("s_waitcnt lgkmcnt(0)")
    st()
    a("s_lshl_b32 s28, s16, 16\ns_and_b32 s29, s16, 0xffff0000")
    for k in range(4):
        unpack(a, 32 + 2 * k, 33 + 2 * k, 16 + 2 * k)
    for k in range(4):
        a(f"v_pk_add_f32 v[{40+2*k}:{41+2*k}], v[{32+2*k}:{33+2*k}], v[{24+2*k}:{25+2*k}] op_sel:[0,0] op_sel_hi:[1,0] neg_lo:[0,1] neg_hi:[0,1]")
    for k in range(4):
        a(f"v_cvt_pk_bf16_f32 v{16+k}, v{40+2*k}, v{41+2*k}")
    for k in range(4):
        unpack(a, 40 + 2 * k, 41 + 2 * k, 16 + k)
    for k in range(4):
        a(f"v_pk_mul_f32 v[{40+2*k}:{41+2*k}], v[{40+2*k}:{41+2*k}], v[{24+2*k}:{25+2*k}] op_sel:[0,1] op_sel_hi:[1,1]")
    for k in range(4):
        a(f"v_cvt_pk_bf16_f32 v{16+k}, v{40+2*k}, v{41+2*k}")
    for k in range(4):
        unpack(a, 40 + 2 * k, 41 + 2 * k, 16 + k)
    a("""
    v_cvt_pk_f16_f32 v20, v40, v42
    v_cvt_pk_f16_f32 v21, v44, v46
    v_cvt_pk_f16_f32 v22, v41, v43
    v_cvt_pk_f16_f32 v23, v45, v47
    """)
    a(f"ds_write_b64 v13, v[20:21]\nds_write_b64 v13, v[22:23] offset:{US}")
    for k in range(4):
        a(f"v_pk_mul_f32 v[{40+2*k}:{41+2*k}], v[{40+2*k}:{41+2*k}], s[28:29]")
    for k in range(4):
        a(f"v_cvt_pk_bf16_f32 v{16+k}, v{40+2*k}, v{41+2*k}")
    for k in range(4):
        unpack(a, 40 + 2 * k, 41 + 2 * k, 16 + k)
    a("s_waitcnt lgkmcnt(0)\ns_barrier")
    st()
    a("s_cmp_ge_u32 s10, 4\ns_cbranch_scc1 conv_side")
    ACC0, ACC1 = 64, 80
    NB = 3
    BUF = 96

    def reads(d, part):
        if d >= 32:
            return
        b = BUF + 16 * (d % NB)
        o1 = 64 * (63 - d)
        o2 = 64 * (63 - d - 32)
        if part == 0:
            a(f"ds_read_b64 v[{b}:{b+1}], v2 offset:{o1}")
            a(f"ds_read_b64 v[{b+2}:{b+3}], v2 offset:{o1+8}")
        elif part == 1:
            a(f"ds_read_b128 v[{b+8}:{b+11}], v3 offset:{80*(31-d)}")
            a(f"ds_read_b128 v[{b+12}:{b+15}], v3 offset:{80*(31-d)+2560}")
        else:
            a(f"ds_read_b64 v[{b+4}:{b+5}], v2 offset:{o2}")
            a(f"ds_read_b64 v[{b+6}:{b+7}], v2 offset:{o2+8}")

    for d in range(2):
        for p in range(3):
            reads(d, p)
    for d in range(32):
        a(f"s_waitcnt lgkmcnt({6 if d < 31 else 0})")
        b = BUF + 16 * (d % NB)
        c0 = "0" if d == 0 else f"v[{ACC0}:{ACC0+15}]"
        c1 = "0" if d == 0 else f"v[{ACC1}:{ACC1+15}]"
        a(f"v_mfma_f32_32x32x16_f16 v[{ACC1}:{ACC1+15}], v[{b}:{b+3}], v[{b+12}:{b+15}], {c1}")
        reads(d + 2, 0)
        a(f"v_mfma_f32_32x32x16_f16 v[{ACC0}:{ACC0+15}], v[{b}:{b+3}], v[{b+8}:{b+11}], {c0}")
        reads(d + 2, 1)
        a(f"v_mfma_f32_32x32x16_f16 v[{ACC1}:{ACC1+15}], v[{b+4}:{b+7}], v[{b+8}:{b+11}], v[{ACC1}:{ACC1+15}]")
        reads(d + 2, 2)
    for g in range(4):
        a(f"ds_write_b128 v4, v[{ACC0+4*g}:{ACC0+4*g+3}] offset:{32*g}")
    for g in range(4):
        a(f"ds_write_b128 v4, v[{ACC1+4*g}:{ACC1+4*g+3}] offset:{32*g+32*144}")
    a("s_waitcnt lgkmcnt(0)\ns_branch conv_join")
    a.c("waves 4-7: pull W1S into this XCD's L2; first conv also builds the colsum fragments")
    a(f"""
    conv_side:
    s_lshr_b32 s30, s2, 3
    s_lshl_b32 s31, s30, 2
    s_add_u32 s31, s31, s10
    s_sub_u32 s31, s31, 4
    s_cmp_ge_u32 s30, 28
    s_cbranch_scc1 conv_side2
    s_lshl_b32 s32, s31, 14
    s_add_u32 s32, s32, {W1S}
    v_lshl_add_u32 v2, v1, 4, s32
    """)
    for i in range(16):
        a(f"global_load_dwordx4 v[{64+4*i}:{67+4*i}], v2, s[8:9] offset:{(i%4)*1024}")
        if i % 4 == 3 and i < 15:
            a("v_add_u32 v2, 4096, v2")
    a(f"""
    s_and_b32 s33, s2, 7
    s_add_u32 s33, s33, s39
    s_cmp_lg_u32 s33, 1
    s_cbranch_scc1 conv_side2
    v_mov_b32 v4, 0
    v_mov_b32 v5, 0
    """)
    for i in range(16):
        a(f"s_waitcnt vmcnt({15-i})")
        for k in range(4):
            r = 64 + 4 * i + k
            a(f"v_lshlrev_b32 v6, 16, v{r}\nv_and_b32 v7, 0xffff0000, v{r}\nv_add_f32 v4, v4, v6\nv_add_f32 v5, v5, v7")
    a(f"""
    v_add_f32 v4, v4, v5
    v_cvt_pk_bf16_f32 v5, v4, v4
    v_lshlrev_b32 v5, 16, v5
    v_sub_f32 v4, v4, v5
    v_cvt_pk_bf16_f32 v6, v4, v4
    v_lshlrev_b32 v6, 16, v6
    v_sub_f32 v4, v4, v6
    v_cvt_pk_bf16_f32 v6, v5, v6
    v_cvt_pk_bf16_f32 v7, v4, 0
    s_lshr_b32 s32, s31, 1
    s_lshl_b32 s32, s32, 10
    s_and_b32 s33, s31, 1
    s_lshl_b32 s33, s33, 3
    s_add_u32 s32, s32, s33
    s_add_u32 s32, s32, {CS}
    v_lshl_add_u32 v2, v1, 4, s32
    global_store_dwordx2 v2, v[6:7], s[8:9]
    conv_side2:
    s_mul_i32 s32, s31, {NP2*1024}
    s_add_u32 s32, s32, {W2S}
    v_lshl_add_u32 v2, v1, 4, s32
    """)
    for i in range(NP2):
        a(f"global_load_dwordx4 v[{128+4*(i%4)}:{131+4*(i%4)}], v2, s[8:9] offset:{(i%4)*1024}")
        if i % 4 == 3:
            a("v_add_u32 v2, 4096, v2")
    a("conv_join:")
    st()
    a("s_barrier")
    st()
    for w in range(4):
        a(f"ds_read_b128 v[{48+4*w}:{51+4*w}], v14 offset:{w*YS}")
    a("s_waitcnt lgkmcnt(0)")
    for c in range(2):
        y = 48 + 8 * c
        for k in range(0, 4, 2):
            a(f"v_pk_add_f32 v[{y+k}:{y+k+1}], v[{y+k}:{y+k+1}], v[{y+4+k}:{y+5+k}]")
        for k in range(4):
            a(f"v_mul_f32 v{y+k}, s{18+c}, v{y+k}")
        for k in range(0, 4, 2):
            a(f"v_cvt_pk_bf16_f32 v{y+4+k}, v{y+k}, v{y+k+1}")
        for k in range(0, 4, 2):
            unpack(a, y + k, y + k + 1, y + 4 + k)
        for k in range(4):
            a(f"v_add_f32 v{y+k}, v{y+k}, v{40+2*k+c}")
        for k in range(0, 4, 2):
            a(f"v_cvt_pk_bf16_f32 v{y+4+k}, v{y+k}, v{y+k+1}")
        for k in range(0, 4, 2):
            unpack(a, y + k, y + k + 1, y + 4 + k)
        for k in range(4):
            a(f"v_add_f32 v{y+k}, v{y+k}, v{32+2*k+c}")
        a(f"v_cvt_pk_bf16_f32 v{y+4}, v{y}, v{y+1}\nv_cvt_pk_bf16_f32 v{y+5}, v{y+2}, v{y+3}")
        if c == 1:
            a("v_add_u32 v15, 4096, v15")
        a(f"global_store_dwordx2 v15, v[{y+4}:{y+5}], s[8:9]")
    st.dump(39, 10, 8)
    a("conv_end:\ns_endpgm")
    nv = BUF + 16 * NB
    return (kd("conv1_kernel", nv, 40, nv) + ".p2align 6\n" + kd("conv2_kernel", nv, 40, nv),
            ("conv1_kernel", 256, 512, LDS), ("conv2_kernel", 256, 512, LDS))


def gen_ffn(a):
    LDS = 131072
    head(a, "ffn1_kernel")
    a(f"s_mov_b32 s3, {XT1}\ns_mov_b32 s4, 0\ns_mov_b32 s5, {HH}\ns_mov_b32 s36, {GR1}\ns_mov_b32 s37, {CN1}\ns_mov_b32 s39, 2\ns_branch ffn_body")
    head(a, "ffn2_kernel")
    a(f"s_mov_b32 s3, {XT3}\ns_mov_b32 s4, 1\ns_mov_b32 s5, {H2}\ns_mov_b32 s36, {GR2}\ns_mov_b32 s37, {CN2}\ns_mov_b32 s39, 4")
    a("ffn_body:\ns_cmp_ge_u32 s2, 256\ns_cbranch_scc1 ffn_end")
    st = Stamper(a)
    st.start()
    a(f"""
    s_load_dwordx2 s[8:9], s[0:1], 96
    s_load_dwordx2 s[6:7], s[0:1], 80
    v_and_b32 v1, 63, v0
    v_lshrrev_b32 v2, 6, v0
    v_readfirstlane_b32 s10, v2
    s_and_b32 s11, s2, 7
    s_lshl_b32 s11, s11, 1
    s_lshr_b32 s12, s2, 7
    s_add_u32 s11, s11, s12
    s_bfe_u32 s12, s2, 0x40003
    """)
    a.c("s10 wave, s11 row block (128 rows), s12 member; s32 lb, s33 db, s34 mt, s35 nt")
    a(f"""
    s_lshl_b32 s13, s12, 2
    s_add_u32 s13, s13, s10
    s_lshl_b32 s32, s11, 1
    s_and_b32 s34, s12, 1
    s_add_u32 s32, s32, s34
    s_lshl_b32 s34, s34, 2
    s_lshr_b32 s33, s12, 1
    s_xor_b32 s33, s33, s34
    s_and_b32 s34, s11, 1
    s_lshl_b32 s34, s34, 1
    s_xor_b32 s33, s33, s34
    s_lshr_b32 s34, s10, 1
    s_and_b32 s35, s10, 1
    s_lshl_b32 s46, s33, 6
    s_lshl_b32 s38, s34, 5
    s_add_u32 s46, s46, s38
    v_lshlrev_b32 v5, 4, v1
    s_mul_i32 s14, s10, {28*2048}
    v_add_u32 v6, s14, v5
    v_mov_b32 v7, v6
    s_mul_i32 s14, s33, {BLK}
    s_add_u32 s14, s14, {W2S}
    s_lshl_b32 s15, s34, 10
    s_add_u32 s28, s14, s15
    s_xor_b32 s15, s15, 1024
    s_add_u32 s30, s14, s15
    s_mul_i32 s14, s32, {BLK}
    s_add_u32 s14, s14, s5
    s_lshl_b32 s15, s35, 10
    s_add_u32 s42, s14, s15
    s_xor_b32 s15, s15, 1024
    s_add_u32 s44, s14, s15
    s_lshl_b32 s22, s13, 15
    s_add_u32 s22, s22, {W1S}
    s_mov_b32 s18, 0x200000
    s_mov_b32 s19, 0x20000
    v_lshrrev_b32 v2, 4, v1
    v_and_b32 v3, 15, v1
    v_lshlrev_b32 v4, 2, v2
    v_xor_b32 v4, v4, v3
    v_lshlrev_b32 v4, 4, v4
    v_lshl_add_u32 v4, v2, 12, v4
    s_lshl_b32 s14, s11, 8
    v_add_u32 v4, s14, v4
    s_lshl_b32 s20, s10, 14
    s_lshl_b32 s21, s10, 10
    s_waitcnt lgkmcnt(0)
    s_add_u32 s16, s8, s3
    s_addc_u32 s17, s9, 0
    """)
    for r in (22, 28, 30, 42, 44):
        a(f"s_add_u32 s{r}, s8, s{r}\ns_addc_u32 s{r+1}, s9, 0")
    a("s_cmp_ge_u32 s12, 14\ns_cbranch_scc1 ffn_helper")

    AF, ACC, BB = 128, 64, 32
    CH = int(os.environ.get('FCH', '2'))
    vm = Vm(a)
    w2n = [0]

    def w2_load(v):
        i = w2n[0]
        if i >= 56:
            return
        k, sl = i >> 1, i & 1
        v.issue(f"global_load_dwordx4 a[{8*k+4*sl}:{8*k+4*sl+3}], v6, s[{28+2*sl}:{29+2*sl}] offset:{(k&1)*2048}", "w2")
        if i % 4 == 3:
            a("v_add_u32 v6, 4096, v6")
        w2n[0] += 1

    def ld_x(s):
        a(f"s_add_u32 m0, s21, {s*4096}")
        a(f"s_add_u32 s24, s20, {s*65536}")
        vm.issue("buffer_load_dwordx4 v4, s[16:19], s24 offen lds", f"c{s//CH}")

    def ld_a(s):
        r = AF + 4 * s
        vm.issue(f"global_load_dwordx4 v[{r}:{r+3}], v5, s[22:23] offset:{(s&3)*1024}", f"c{s//CH}")
        if s & 3 == 3:
            a("v_add_u32 v5, 4096, v5")

    D = int(os.environ.get('FD', '8'))
    for s in range(D):
        ld_x(s)
        ld_a(s)
        if s == 1:
            a.c("tr-read addresses v8..v11; granule address v12; colsum address v13")
            a(f"""
            v_bfe_u32 v2, v1, 2, 2
            v_lshrrev_b32 v3, 5, v1
            v_lshlrev_b32 v12, 11, v3
            v_lshl_add_u32 v12, v2, 8, v12
            v_bfe_u32 v3, v1, 4, 1
            v_lshl_add_u32 v12, v3, 5, v12
            v_and_b32 v3, 3, v1
            v_lshl_add_u32 v12, v3, 3, v12
            """)
            for t in range(4):
                a(f"v_xor_b32 v3, {t}, v2\nv_lshl_add_u32 v{8+t}, v3, 6, v12")
            a(f"""
            v_and_b32 v2, 31, v1
            s_lshl_b32 s14, s11, 10
            s_add_u32 s14, s14, s36
            v_lshl_add_u32 v12, v2, 3, s14
            s_lshl_b32 s14, s13, 10
            s_add_u32 s14, s14, {CS}
            v_lshl_add_u32 v13, v1, 4, s14
            """)

    def rd(s, t):
        if s >= 32:
            return
        b = BB + 16 * (s & 1)
        if s == 16:
            a(f"v_add_u32 v{8+t}, 0x10000, v{8+t}")
        o = (s & 15) * 4096
        a(f"ds_read_b64_tr_b16 v[{b+4*t}:{b+4*t+1}], v{8+t} offset:{o}")
        a(f"ds_read_b64_tr_b16 v[{b+4*t+2}:{b+4*t+3}], v{8+t} offset:{o+1024}")

    def gran_loads(v):
        for t in range(4):
            v.issue(f"global_load_dwordx2 v[{16+2*t}:{17+2*t}], v12, s[8:9] offset:{256*t} sc1", "gr")

    vm.wait("c0")
    a("s_barrier")
    st()
    for t in range(4):
        rd(0, t)
    for s in range(32):
        b = BB + 16 * (s & 1)
        af = AF + 4 * s
        for t in range(4):
            a(f"s_waitcnt lgkmcnt({6 if s < 31 else 6 - 2*t})")
            cc = "0" if s == 0 else f"v[{ACC+16*t}:{ACC+16*t+15}]"
            a(f"v_mfma_f32_32x32x16_bf16 v[{ACC+16*t}:{ACC+16*t+15}], v[{af}:{af+3}], v[{b+4*t}:{b+4*t+3}], {cc}")
            if t == 0 and (s + 1) % CH == 0 and s + 1 < 32:
                vm.wait(f"c{(s+1)//CH}")
                if not (os.environ.get('NOBAR') and s > 16):
                    a("s_barrier")
            rd(s + 1, t)
            if t == 1:
                if s + D < 32:
                    ld_x(s + D)
                elif s == 32 - D:
                    vm.issue("global_load_dwordx4 v[24:27], v13, s[8:9]", "cs")
                elif not os.environ.get('NOW2'):
                    w2_load(vm)
            if t == 3:
                if s + D < 32:
                    ld_a(s + D)
                elif s == 28:
                    gran_loads(vm)
                elif not os.environ.get('NOW2'):
                    w2_load(vm)
        if s in (15,) and os.environ.get('MID'):
            st()
    st()
    a.c("residual tile (packed bf16, D layout) from the x tile: v48..55")
    a(f"""
    s_and_b32 s24, s12, 1
    s_lshl_b32 s24, s24, 1
    s_add_u32 s24, s24, s35
    v_bfe_u32 v2, v1, 2, 2
    v_xor_b32 v3, s24, v2
    v_lshlrev_b32 v3, 6, v3
    v_lshl_add_u32 v3, v2, 8, v3
    v_bfe_u32 v2, v1, 4, 1
    v_lshl_add_u32 v3, v2, 5, v3
    v_and_b32 v2, 3, v1
    v_lshl_add_u32 v3, v2, 3, v3
    v_lshrrev_b32 v2, 5, v1
    v_lshl_add_u32 v3, v2, 10, v3
    s_lshl_b32 s24, s46, 8
    v_add_u32 v3, s24, v3
    """)
    for g in range(4):
        a(f"ds_read_b64_tr_b16 v[{56+2*g}:{57+2*g}], v3 offset:{g*2048}")
    vm.wait("gr", "cs")
    a("""
    ffn_chk:
    v_min_u32 v2, v17, v19
    v_min3_u32 v2, v2, v21, v23
    v_cmp_eq_u32 vcc, 0, v2
    s_cbranch_vccnz ffn_retry
    """)
    a(f"s_mov_b32 s26, {f2u(-LOG2E)}")
    for t in range(4):
        for k in range(4):
            a(f"v_mov_b32 v{32+4*t+k}, v{16+2*t}")
        b = 32 + 4 * t
        a(f"v_rcp_f32 v{16+2*t}, v{17+2*t}")
        w2_load(vm)
        a(f"v_mfma_f32_32x32x16_bf16 v[{ACC+16*t}:{ACC+16*t+15}], v[24:27], v[{b}:{b+3}], v[{ACC+16*t}:{ACC+16*t+15}]")
    for t in range(4):
        a(f"v_mul_f32 v{16+2*t}, s26, v{16+2*t}")
    a.c("H store base")
    a(f"""
    s_mul_i32 s24, s11, {2*BLK}
    s_lshl_b32 s38, s13, 12
    s_add_u32 s24, s24, s38
    s_add_u32 s24, s24, s5
    s_add_u32 s40, s8, s24
    s_addc_u32 s41, s9, 0
    v_lshlrev_b32 v12, 4, v1
    v_add_u32 v13, {BLK}, v12
    """)
    st()
    NS = int(os.environ.get('NS', '3'))
    for t in range(4):
        A0 = ACC + 16 * t
        R = 16 + 2 * t
        TT = AF + 32 * t
        for k in range(0, 16, 2):
            a(f"v_pk_mul_f32 v[{TT+k}:{TT+k+1}], v[{A0+k}:{A0+k+1}], v[{R}:{R+1}] op_sel:[0,0] op_sel_hi:[1,0]")
        for k in range(16):
            a(f"v_exp_f32 v{TT+k}, v{TT+k}")
            if (k == 8 and NS >= 1) or (k == 0 and NS >= 4):
                w2_load(vm)
        for k in range(0, 16, 2):
            a(f"v_pk_fma_f32 v[{TT+k}:{TT+k+1}], v[{TT+k}:{TT+k+1}], v[{R}:{R+1}], v[{R}:{R+1}] op_sel:[0,1,1] op_sel_hi:[1,1,1]")
        for k in range(16):
            a(f"v_rcp_f32 v{TT+k}, v{TT+k}")
            if (k == 0 and NS >= 2) or (k == 9 and NS >= 3):
                w2_load(vm)
        for k in range(0, 16, 2):
            a(f"v_pk_mul_f32 v[{A0+k}:{A0+k+1}], v[{A0+k}:{A0+k+1}], v[{TT+k}:{TT+k+1}]")
        for k in range(0, 16, 2):
            a(f"v_cvt_pk_bf16_f32 v{TT+16+k//2}, v{A0+k}, v{A0+k+1}")
        ad = 12 + (t >> 1)
        vm.issue(f"global_store_dwordx4 v{ad}, v[{TT+16}:{TT+19}], s[40:41] offset:{(t&1)*1024} sc1", "h")
        vm.issue(f"global_store_dwordx4 v{ad}, v[{TT+20}:{TT+23}], s[40:41] offset:{(t&1)*1024+2048} sc1", "h")
    st()
    for _ in range(int(os.environ.get('ND', '8'))):
        w2_load(vm)
    vm.wait("h")
    a("s_barrier")
    st()
    a(f"""
    s_lshl_b32 s24, s11, 8
    s_add_u32 s24, s24, s37
    v_mov_b32 v14, s24
    v_mov_b32 v15, 1
    s_cmp_lg_u32 s10, 0
    s_cbranch_scc1 ffn_nosig
    s_mov_b64 exec, 1
    global_atomic_add v14, v15, s[8:9] sc1
    s_mov_b64 exec, -1
    ffn_nosig:
    """)
    while w2n[0] < 56:
        w2_load(vm)
    st()
    a("ffn_sync:")
    a.c("v3 = l, v4 = half; residual -> f32 v16..31")
    a(f"""
    v_and_b32 v3, 31, v1
    v_lshrrev_b32 v4, 5, v1
    s_lshl_b32 s24, s32, 6
    s_lshl_b32 s38, s35, 5
    s_add_u32 s24, s24, s38
    v_add_u32 v3, s24, v3
    s_lshl_b32 s47, s46, 12
    s_waitcnt lgkmcnt(0)
    """)
    for k in range(8):
        unpack(a, 16 + 2 * k, 17 + 2 * k, 56 + k)
    a(f"""
    s_cmp_lg_u32 s10, 0
    s_cbranch_scc1 ffn_go
    ffn_poll:
    global_load_dword v15, v14, s[8:9] sc1
    s_waitcnt vmcnt(0)
    v_cmp_gt_u32 vcc, 14, v15
    s_cbranch_vccnz ffn_poll
    ffn_go:
    s_waitcnt vmcnt(40)
    s_barrier
    """)
    st()
    vm = Vm(a)
    slot = lambda k: (AF + 8 * (k % 20)) if (k % 20) < 16 else (32 + 8 * ((k % 20) - 16))

    def ld_h(k, sl):
        if k >= 28:
            return
        b = slot(k) + 4 * sl
        vm.issue(f"global_load_dwordx4 v[{b}:{b+3}], v7, s[{42+2*sl}:{43+2*sl}] offset:{(k&1)*2048} sc1", f"h{k}")
        if (k & 1) and sl:
            a("v_add_u32 v7, 4096, v7")

    D2 = int(os.environ.get('D2', '8'))
    for k in range(D2):
        ld_h(k, 0)
        ld_h(k, 1)
    for k in range(28):
        vm.wait(f"h{k}")
        b = slot(k)
        for i, (x, y) in enumerate(((0, 0), (0, 1), (1, 0), (1, 1))):
            cc = "0" if k == 0 else f"v[{ACC+16*i}:{ACC+16*i+15}]"
            a(f"v_mfma_f32_32x32x16_bf16 v[{ACC+16*i}:{ACC+16*i+15}], a[{8*k+4*x}:{8*k+4*x+3}], v[{b+4*y}:{b+4*y+3}], {cc}")
            if i == 0:
                ld_h(k + D2, 0)
            if i == 2:
                ld_h(k + D2, 1)
    st()
    a.c("cross-wave reduction")
    a("v_lshlrev_b32 v6, 4, v1")
    for i in range(1, 4):
        a(f"s_xor_b32 s24, s10, {i}\ns_mul_i32 s24, s24, 12288\ns_add_u32 s24, s24, {(i-1)*4096}\nv_add_u32 v7, s24, v6")
        for g in range(4):
            r = ACC + 16 * i + 4 * g
            a(f"ds_write_b128 v7, v[{r}:{r+3}] offset:{g*1024}")
    a("s_mul_i32 s24, s10, 12288\nv_add_u32 v7, s24, v6\ns_waitcnt lgkmcnt(0)\ns_barrier")
    for i in range(3):
        for g in range(4):
            r = ACC + 16 * (i + 1) + 4 * g
            a(f"ds_read_b128 v[{r}:{r+3}], v7 offset:{i*4096+g*1024}")
    a("s_waitcnt lgkmcnt(8)")
    for k in range(0, 16, 2):
        a(f"v_pk_add_f32 v[{ACC+k}:{ACC+k+1}], v[{ACC+k}:{ACC+k+1}], v[{ACC+16+k}:{ACC+17+k}]")
    a("s_waitcnt lgkmcnt(4)")
    for k in range(0, 16, 2):
        a(f"v_pk_add_f32 v[{ACC+k}:{ACC+k+1}], v[{ACC+k}:{ACC+k+1}], v[{ACC+32+k}:{ACC+33+k}]")
    a("s_waitcnt lgkmcnt(0)")
    for k in range(0, 16, 2):
        a(f"v_pk_add_f32 v[{ACC+k}:{ACC+k+1}], v[{ACC+k}:{ACC+k+1}], v[{ACC+48+k}:{ACC+49+k}]")
    for k in range(0, 16, 2):
        a(f"v_cvt_pk_bf16_f32 v{32+k//2}, v{ACC+k}, v{ACC+k+1}")
    for k in range(0, 16, 2):
        unpack(a, ACC + k, ACC + k + 1, 32 + k // 2)
    for k in range(0, 16, 2):
        a(f"v_pk_add_f32 v[{ACC+k}:{ACC+k+1}], v[{ACC+k}:{ACC+k+1}], v[{16+k}:{17+k}]")
    for k in range(0, 16, 2):
        a(f"v_cvt_pk_bf16_f32 v{32+k//2}, v{ACC+k}, v{ACC+k+1}")
    st()
    a("s_cmp_eq_u32 s4, 1\ns_cbranch_scc1 ffn_final")
    a(f"""
    s_add_u32 s24, s47, {XQ2}
    v_lshlrev_b32 v5, 14, v4
    v_lshl_add_u32 v5, v3, 3, v5
    v_add_u32 v5, s24, v5
    """)
    for g in range(4):
        a(f"global_store_dwordx2 v5, v[{32+2*g}:{33+2*g}], s[8:9]")
        if g < 3:
            a("v_add_u32 v5, 0x8000, v5")
    a("s_mov_b32 s24, 0x3f803f80\nv_mov_b32 v8, 0\nv_mov_b32 v9, 0")
    for k in range(8):
        a(f"v_dot2c_f32_bf16 v8, s24, v{32+k}\nv_dot2c_f32_bf16 v9, v{32+k}, v{32+k}")
    a(f"""
    v_lshlrev_b32 v6, 2, v4
    v_lshl_add_u32 v6, v3, 3, v6
    v_add_u32 v6, {ST2}, v6
    v_permlane32_swap_b32 v8, v9
    v_add_f32 v8, v8, v9
    global_atomic_add_f32 v6, v8, s[8:9]
    s_branch ffn_tail
    ffn_final:
    s_lshl_b32 s24, s46, 1
    v_lshlrev_b32 v5, 3, v4
    v_lshl_add_u32 v5, v3, 10, v5
    v_add_u32 v5, s24, v5
    """)
    for g in range(4):
        a(f"global_store_dwordx2 v5, v[{32+2*g}:{33+2*g}], s[6:7] offset:{16*g}")
    a("ffn_tail:")
    st.dump(39, 10, 8)
    a("ffn_end:\ns_endpgm")
    a("ffn_retry:")
    gran_loads(Vm(a))
    a("s_waitcnt vmcnt(0)\ns_branch ffn_chk")
    a("ffn_helper:")
    vm = Vm(a)
    a(f"""
    v_lshrrev_b32 v2, 3, v1
    v_and_b32 v3, 7, v1
    v_bfe_u32 v4, v1, 4, 1
    v_lshlrev_b32 v4, 2, v4
    v_xor_b32 v4, v4, v3
    v_lshlrev_b32 v4, 4, v4
    v_lshl_add_u32 v4, v2, 12, v4
    s_mov_b32 s14, s32
    s_lshl_b32 s24, s14, 7
    v_add_u32 v4, s24, v4
    s_lshl_b32 s20, s10, 19
    s_lshl_b32 s21, s10, 14
    """)
    for i in range(16):
        a(f"s_add_u32 m0, s21, {i*1024}")
        a(f"s_add_u32 s24, s20, {i*32768}")
        vm.issue("buffer_load_dwordx4 v4, s[16:19], s24 offen lds", f"x{i//4}")
    a(f"""
    v_bfe_u32 v2, v1, 2, 2
    v_lshrrev_b32 v3, 5, v1
    v_lshl_add_u32 v3, v3, 2, v2
    v_lshlrev_b32 v8, 7, v3
    v_bfe_u32 v3, v1, 4, 1
    v_lshl_add_u32 v8, v3, 5, v8
    v_and_b32 v3, 3, v1
    v_lshl_add_u32 v8, v3, 3, v8
    v_add_u32 v8, s21, v8
    v_lshrrev_b32 v2, 1, v2
    v_lshl_add_u32 v9, v2, 6, v8
    v_xor_b32 v2, 1, v2
    v_lshl_add_u32 v8, v2, 6, v8
    v_mov_b32 v16, 0
    v_mov_b32 v17, 0
    v_mov_b32 v18, 0
    v_mov_b32 v19, 0
    s_mov_b32 s25, 0x3f803f80
    """)
    a.c("v9 = tile 0 address, v8 = tile 1 address")
    for q in range(4):
        vm.wait(f"x{q}")
        for i in range(4):
            a(f"ds_read_b64_tr_b16 v[{32+4*i}:{33+4*i}], v9 offset:{(4*q+i)*1024}")
            a(f"ds_read_b64_tr_b16 v[{34+4*i}:{35+4*i}], v8 offset:{(4*q+i)*1024}")
        for i in range(4):
            a(f"s_waitcnt lgkmcnt({6-2*i})")
            for k in range(2):
                a(f"v_dot2c_f32_bf16 v16, s25, v{32+4*i+k}\nv_dot2c_f32_bf16 v17, v{32+4*i+k}, v{32+4*i+k}")
                a(f"v_dot2c_f32_bf16 v18, s25, v{34+4*i+k}\nv_dot2c_f32_bf16 v19, v{34+4*i+k}, v{34+4*i+k}")
    XB = 65536
    a(f"""
    v_lshlrev_b32 v2, 4, v0
    v_add_u32 v2, {XB}, v2
    ds_write_b128 v2, v[16:19]
    v_and_b32 v2, 31, v1
    v_lshrrev_b32 v3, 5, v1
    v_lshlrev_b32 v2, 4, v2
    v_lshl_add_u32 v2, v3, 3, v2
    v_add_u32 v2, {XB}, v2
    s_waitcnt lgkmcnt(0)
    s_barrier
    s_cmp_lg_u32 s10, 0
    s_cbranch_scc1 ffn_help2
    """)
    for i in range(8):
        a(f"ds_read_b64 v[{32+2*i}:{33+2*i}], v2 offset:{i*512}")
    a(f"s_mov_b32 s26, {f2u(1.0/512)}\ns_mov_b32 s27, {f2u(1e-5)}\ns_waitcnt lgkmcnt(0)")
    for i in range(4):
        a(f"v_pk_add_f32 v[{32+2*i}:{33+2*i}], v[{32+2*i}:{33+2*i}], v[{40+2*i}:{41+2*i}]")
    a("v_pk_add_f32 v[32:33], v[32:33], v[36:37]\nv_pk_add_f32 v[34:35], v[34:35], v[38:39]\nv_pk_add_f32 v[32:33], v[32:33], v[34:35]")
    a(f"""
    v_mul_f32 v32, s26, v32
    v_mul_f32 v33, s26, v33
    v_fma_f32 v33, -v32, v32, v33
    v_max_f32 v33, 0, v33
    v_cvt_pk_bf16_f32 v32, -v32, -v32
    v_cvt_pk_bf16_f32 v33, v33, v33
    v_lshlrev_b32 v33, 16, v33
    v_add_f32 v33, s27, v33
    v_cvt_pk_bf16_f32 v33, v33, v33
    v_lshlrev_b32 v33, 16, v33
    v_sqrt_f32 v33, v33
    v_cvt_pk_bf16_f32 v33, v33, v33
    v_lshlrev_b32 v33, 16, v33
    s_lshl_b32 s24, s14, 9
    s_add_u32 s24, s24, s36
    v_lshl_add_u32 v2, v1, 3, s24
    global_store_dwordx2 v2, v[32:33], s[8:9] sc1
    ffn_help2:
    v_bfe_u32 v2, v1, 3, 1
    v_xor_b32 v3, s35, v2
    v_lshlrev_b32 v3, 6, v3
    v_bfe_u32 v2, v1, 2, 2
    v_lshl_add_u32 v3, v2, 7, v3
    v_bfe_u32 v2, v1, 4, 1
    v_lshl_add_u32 v3, v2, 5, v3
    v_and_b32 v2, 3, v1
    v_lshl_add_u32 v3, v2, 3, v3
    v_lshrrev_b32 v2, 5, v1
    v_lshl_add_u32 v3, v2, 9, v3
    s_lshl_b32 s24, s46, 7
    v_add_u32 v3, s24, v3
    ds_read_b64_tr_b16 v[56:57], v3
    ds_read_b64_tr_b16 v[58:59], v3 offset:1024
    ds_read_b64_tr_b16 v[60:61], v3 offset:2048
    ds_read_b64_tr_b16 v[62:63], v3 offset:3072
    s_lshl_b32 s24, s11, 8
    s_add_u32 s24, s24, s37
    v_mov_b32 v14, s24
    """)
    w2n[0] = 0
    vm = Vm(a)
    for _ in range(56):
        w2_load(vm)
    a("s_branch ffn_sync")
    return (kd("ffn1_kernel", 512, 48, 256) + ".p2align 6\n" + kd("ffn2_kernel", 512, 48, 256),
            ("ffn1_kernel", 256, 256, LDS), ("ffn2_kernel", 256, 256, LDS))


def main():
    out = sys.argv[1] if len(sys.argv) > 1 else f"cdna_kernels/{NAME}.s"
    global DIAG
    DIAG = "--diag" in sys.argv
    a = Asm()
    k0, l0 = gen_prep(a)
    kc, c1, c2 = gen_conv(a)
    k1, f1, f2 = gen_ffn(a)
    launches = [l0, c1, f1, c2, f2]
    hdr = "; generated by work/gen.py (hand-written instruction streams, script-expanded)\n"
    for n, g, b, l in launches:
        hdr += f"; @launch kernel={n} grid=({g},1,1) block=({b},1,1) lds={l}\n"
    txt = hdr + '.amdgcn_target "amdgcn-amd-amdhsa--gfx950"\n.text\n' + a.text()
    txt += '.section .rodata,"a"\n'
    for k in (k0, kc, k1):
        txt += ".p2align 6\n" + k
    open(out, "w").write(txt)


if __name__ == "__main__":
    main()
```

```python
import sys, math, os
from asmlib import *

NAME = "interleave_layers__ssm_conv_s4d__dense_activation_silu__prompt"

XQ0 = 0x0000000
KR = 0x0200000
W1S = 0x0400000
W2S = 0x05C0000
ST0 = 0x0780000
KINV = 0x0784000
CS = 0x0790000
ZB = 0x07A0000
XT1 = 0x0800000
HH = 0x0A00000
SEP = bool(os.environ.get('SEP'))
XQ2 = 0x1200000 if SEP else XQ0
XT3 = 0x1400000
H2 = HH
ST2 = ZB
GR1 = ZB + 0x4000
GR2 = ZB + 0x8000
CN1 = ZB + 0x10000
CN2 = CN1 + 8
BF = ZB + 0x18000
LOG2E = 1.4426950408889634
BLK = 229376


DIAG = False
DG = 0x4000000
STAMP0 = 74


class Stamper:
    def __init__(self, a):
        self.a, self.n = a, 0

    def start(self):
        if not DIAG:
            return
        self.a(f"s_memrealtime s[72:73]\ns_memtime s[{STAMP0}:{STAMP0+1}]\ns_waitcnt lgkmcnt(0)")
        self.n = 1

    def __call__(self):
        if not DIAG:
            return
        r = STAMP0 + 2 * self.n
        self.a(f"s_memtime s[{r}:{r+1}]\ns_waitcnt lgkmcnt(0)")
        self.n += 1
        assert r + 1 < 100

    def dump(self, slot_sgpr, wave, ws):
        if not DIAG:
            return
        a = self.a
        self()
        a(f"s_memrealtime s[100:101]\ns_waitcnt vmcnt(0) lgkmcnt(0)")
        a(f"""
        s_lshl_b32 s73, s{slot_sgpr}, 8
        s_add_u32 s73, s73, s2
        s_lshl_b32 s73, s73, 3
        s_add_u32 s73, s73, s{wave}
        s_lshl_b32 s73, s73, 6
        s_add_u32 s73, s73, {DG}
        v_mov_b32 v0, s73
        s_mov_b64 exec, 1
        v_mov_b32 v1, s72
        global_store_dword v0, v1, s[{ws}:{ws+1}]
        v_mov_b32 v1, s100
        global_store_dword v0, v1, s[{ws}:{ws+1}] offset:4
        """)
        for i in range(self.n):
            a(f"v_mov_b32 v1, s{STAMP0+2*i}\nglobal_store_dword v0, v1, s[{ws}:{ws+1}] offset:{8+4*i}")


def kd(name, vgpr, sgpr, accum):
    if DIAG:
        sgpr = 102
    return f""".amdhsa_kernel {name}
  .amdhsa_next_free_vgpr {vgpr}
  .amdhsa_next_free_sgpr {sgpr}
  .amdhsa_accum_offset {accum}
  .amdhsa_group_segment_fixed_size 0
  .amdhsa_kernarg_size 104
  .amdhsa_user_sgpr_count 2
  .amdhsa_user_sgpr_kernarg_segment_ptr 1
  .amdhsa_system_sgpr_workgroup_id_x 1
.end_amdhsa_kernel
"""


def head(a, name):
    a(f".globl {name}\n.p2align 8\n.type {name},@function\n{name}:")


def addr64(a, d, base, off):
    a(f"s_add_u32 s{d}, s{base}, {off}\ns_addc_u32 s{d+1}, s{base+1}, 0")


def unpack(a, lo, hi, src):
    a(f"v_lshlrev_b32 v{lo}, 16, v{src}\nv_and_b32 v{hi}, 0xffff0000, v{src}")


def wave_reduce(a, op, regs):
    for m in ("quad_perm:[1,0,3,2] row_mask:0xf", "quad_perm:[2,3,0,1] row_mask:0xf",
              "row_half_mirror row_mask:0xf", "row_mirror row_mask:0xf",
              "row_bcast:15 row_mask:0xa", "row_bcast:31 row_mask:0xc"):
        for r in regs:
            a(f"{op}_dpp v{r}, v{r}, v{r} {m} bank_mask:0xf")


def code_prefetch(a, first, last, vt, vd, sp, wsel=None):
    lab = f"pf_{first}_{sp}"
    a(f"""
    s_getpc_b64 s[{sp}:{sp+1}]
    {lab}:
    s_add_u32 s{sp}, s{sp}, {first}-{lab}
    s_addc_u32 s{sp+1}, s{sp+1}, 0
    v_lshlrev_b32 v{vt}, 7, v0
    v_min_u32 v{vt}, {last}-{first}-4, v{vt}
    global_load_dword v{vd}, v{vt}, s[{sp}:{sp+1}]
    """)


def cmul(a, d, z, w):
    a(f"v_pk_mul_f32 v[{d}:{d+1}], v[{z}:{z+1}], v[{w}:{w+1}] op_sel:[0,0] op_sel_hi:[1,0]")
    return f"v_pk_fma_f32 v[{d}:{d+1}], v[{z}:{z+1}], v[{w}:{w+1}], v[{d}:{d+1}] op_sel:[1,1,0] op_sel_hi:[0,1,1] neg_lo:[0,1,0]"


def gen_prep(a):
    name = "prep_kernel"
    SC = os.environ.get("PSC", "")
    RS = 528
    FT = 32 * RS
    TB = 4 * FT
    TS = 89 * 128
    head(a, name)
    a("s_cmp_ge_u32 s2, 256\ns_cbranch_scc1 prep_end")
    st = Stamper(a)
    st.start()
    a(f"""
    s_load_dwordx16 s[4:19], s[0:1], 0
    s_load_dwordx4 s[20:23], s[0:1], 64
    s_load_dwordx2 s[24:25], s[0:1], 96
    """)
    if not os.environ.get("NOPF"):
        code_prefetch(a, "prep_pf", "code_end", 100, 101, 70)
    a(f"""
    prep_pf:
    v_and_b32 v1, 63, v0
    v_lshrrev_b32 v2, 6, v0
    v_readfirstlane_b32 s26, v2
    s_and_b32 s27, s2, 7
    s_lshl_b32 s27, s27, 5
    s_lshr_b32 s28, s2, 3
    s_or_b32 s27, s27, s28
    s_lshr_b32 s29, s26, 2
    s_lshl_b32 s28, s27, 1
    s_add_u32 s28, s28, s29
    s_bfe_u32 s56, s26, 0x10001
    s_xor_b32 s57, s26, s29
    s_and_b32 s57, s57, 1
    s_lshl_b32 s30, s28, 8
    s_lshl_b32 s31, s56, 7
    s_add_u32 s31, s31, s30
    v_lshl_add_u32 v3, v1, 1, s31
    v_lshlrev_b32 v4, 2, v1
    v_add_u32 v7, s30, v4
    s_lshl_b32 s31, s27, 2
    v_mov_b32 v10, 0
    v_mov_b32 v11, 0
    v_mov_b32 v12, 0
    v_mov_b32 v13, 0
    """)
    a.c("s26=wave s27=cp s28=ch s29=ch&1 s56=mode half s57=side(0 coarse,1 fine) v1=lane v4=lane*4")
    a(f"""
    s_lshr_b32 s32, s2, 3
    s_and_b32 s33, s2, 7
    s_lshl_b32 s34, s32, 16
    s_lshl_b32 s35, s33, 7
    s_add_u32 s34, s34, s35
    s_lshl_b32 s35, s26, 4
    s_add_u32 s34, s34, s35
    v_lshlrev_b32 v5, 10, v1
    v_add_u32 v5, s34, v5
    s_lshl_b32 s35, s2, 3
    s_add_u32 s35, s35, s26
    s_lshl_b32 s36, s35, 10
    v_lshlrev_b32 v6, 4, v1
    v_add_u32 v6, s36, v6
    s_waitcnt lgkmcnt(0)
    s_load_dword s37, s[14:15], s31
    global_load_short_d16_hi v10, v3, s[6:7]
    global_load_short_d16_hi v11, v3, s[8:9]
    global_load_short_d16_hi v12, v3, s[10:11]
    global_load_short_d16_hi v13, v3, s[12:13]
    global_load_dword v8, v7, s[10:11]
    global_load_dword v9, v7, s[12:13]
    s_barrier
    global_load_dwordx4 v[18:21], v6, s[4:5]
    global_load_dwordx4 v[14:17], v5, s[4:5]
    """)
    a.c("weight shuffle task: s40..43 SRD, s44 base, s45 stride1, s46 stride4, s47 dst, s48/s49 lane strides")
    a(f"""
    s_mul_i32 s38, s2, 7
    s_min_u32 s39, s26, 6
    s_add_u32 s38, s38, s39
    s_mov_b32 s42, 1835008
    s_mov_b32 s43, 0x20000
    s_cmp_ge_u32 s38, 896
    s_cbranch_scc1 prep_w2
    s_mov_b32 s40, s20
    s_mov_b32 s41, s21
    s_mul_hi_u32 s39, s38, 306783379
    s_mul_i32 s44, s39, 14
    s_sub_u32 s50, s38, s44
    s_mul_i32 s44, s39, {8*3584}
    s_lshl_b32 s45, s50, 8
    s_add_u32 s44, s44, s45
    s_mov_b32 s45, 3584
    s_mov_b32 s46, {4*3584}
    s_lshl_b32 s47, s50, 17
    s_lshl_b32 s51, s39, 9
    s_add_u32 s47, s47, s51
    s_add_u32 s47, s47, {W1S}
    s_mov_b32 s48, 65536
    s_mov_b32 s49, 32768
    s_branch prep_wj
    prep_w2:
    s_mov_b32 s40, s22
    s_mov_b32 s41, s23
    s_sub_u32 s38, s38, 896
    s_lshr_b32 s39, s38, 2
    s_and_b32 s50, s38, 3
    s_lshr_b32 s51, s39, 1
    s_and_b32 s52, s39, 1
    s_lshl_b32 s44, s51, 14
    s_lshl_b32 s45, s52, 12
    s_add_u32 s44, s44, s45
    s_lshl_b32 s45, s50, 8
    s_add_u32 s44, s44, s45
    s_mov_b32 s45, 1024
    s_mov_b32 s46, 8192
    s_mul_i32 s47, s50, {2*BLK}
    s_lshl_b32 s53, s51, 11
    s_add_u32 s47, s47, s53
    s_lshl_b32 s53, s52, 9
    s_add_u32 s47, s47, s53
    s_add_u32 s47, s47, {W2S}
    s_mov_b32 s48, {BLK}
    s_mov_b32 s49, 1024
    prep_wj:
    s_add_u32 s54, s44, s46
    """)
    a.c("(wave 7 repeats wave 6's loads so that every wave counts the same; it does not store them)")
    for j in range(4):
        a(f"buffer_load_dword v{22+j}, v4, s[40:43], s44 offen")
        a(f"buffer_load_dword v{26+j}, v4, s[40:43], s54 offen")
        if j < 3:
            a("s_add_u32 s44, s44, s45\ns_add_u32 s54, s54, s45")
    if os.environ.get("TOUCH"):
        a.c("touch the lines later launches will write (x1 / H / out): brings them into the memory-side cache")
        a(f"""
        s_load_dwordx2 s[68:69], s[0:1], 80
        s_lshl_b32 s64, s2, 3
        s_add_u32 s64, s64, s26
        v_lshlrev_b32 v110, 7, v1
        s_cmp_lt_u32 s64, 1152
        s_cbranch_scc0 prep_t2
        s_lshl_b32 s65, s64, 13
        s_add_u32 s65, s65, {XT1}
        v_add_u32 v110, s65, v110
        global_load_dword v111, v110, s[24:25]
        s_branch prep_t3
        prep_t2:
        s_and_b32 s65, s64, 255
        s_lshl_b32 s65, s65, 13
        v_add_u32 v110, s65, v110
        s_waitcnt lgkmcnt(0)
        global_load_dword v111, v110, s[68:69]
        prep_t3:
        """)
    a.c("v30..37: gather addresses")
    a(f"""
    v_and_b32 v7, 255, v0
    v_lshlrev_b32 v38, 3, v7
    v_sub_u32 v38, 2047, v38
    s_mul_i32 s55, s29, {4*TS}
    s_add_u32 s55, s55, {TB}
    """)
    for e in range(0, 8, 2):
        a(f"""
        v_subrev_u32 v44, {e}, v38
        v_subrev_u32 v45, {e+1}, v38
        v_cvt_f32_u32 v44, v44
        v_cvt_f32_u32 v45, v45
        v_cvt_pk_bf16_f32 v46, v44, v45
        """)
        unpack(a, 44, 45, 46)
        a("v_cvt_u32_f32 v44, v44\nv_cvt_u32_f32 v45, v45")
        for k in range(2):
            p = 44 + k
            a(f"""
            v_lshrrev_b32 v46, 8, v{p}
            v_and_b32 v47, 7, v{p}
            v_lshl_or_b32 v46, v46, 3, v47
            v_bfe_u32 v47, v{p}, 3, 5
            v_lshl_or_b32 v46, v46, 5, v47
            v_lshl_add_u32 v{30+e+k}, v46, 2, s55
            """)
    a(f"""
    v_and_b32 v44, 31, v1
    s_mul_i32 s58, s26, {TS}
    s_add_u32 s58, s58, {TB}
    v_lshrrev_b32 v45, 5, v1
    v_mul_u32_u24 v51, {RS}, v44
    v_lshl_add_u32 v44, v44, 2, s58
    v_lshl_add_u32 v40, v45, 9, v44
    v_lshl_add_u32 v48, v45, 12, v44
    v_lshl_add_u32 v41, v45, 10, v44
    v_lshlrev_b32 v46, 8, v45
    v_add_u32 v46, 256, v46
    v_add_u32 v42, v41, v46
    v_add_u32 v43, v42, v46
    v_add_u32 v49, v43, v46
    """)
    a.c("v40: g0 base (off r*128); v41,v42,v43,v49: g1 r=0..3 (off 1024); v48: g2 base (off 4096+r*1024)")
    a.c("v50: factor table write address; v51: fragment read address")
    a(f"""
    s_lshl_b32 s58, s29, 1
    s_add_u32 s58, s58, s57
    s_mul_i32 s58, s58, {FT}
    s_lshl_b32 s59, s56, 8
    s_add_u32 s58, s58, s59
    v_add_u32 v50, s58, v4
    v_lshl_add_u32 v51, v45, 4, v51
    s_mul_i32 s58, s29, {2*FT}
    s_and_b32 s59, s26, 3
    s_lshl_b32 s59, s59, 7
    s_add_u32 s58, s58, s59
    v_add_u32 v51, s58, v51
    s_mov_b32 s60, {f2u(LOG2E)}
    s_mov_b32 s61, {f2u(-LOG2E)}
    """)
    st()
    a(f"s_waitcnt vmcnt({11 if os.environ.get('TOUCH') else 10}) lgkmcnt(0)")
    st()
    a(f"""
    s_lshl_b32 s59, s29, 4
    s_lshr_b32 s37, s37, s59
    s_lshl_b32 s37, s37, 16
    v_mov_b32 v52, s60
    v_mul_f32 v52, s37, v52
    v_mul_f32 v10, s60, v10
    v_exp_f32 v52, v52
    v_exp_f32 v10, v10
    v_cvt_pk_bf16_f32 v53, v52, v10
    """)
    unpack(a, 52, 10, 53)
    a(f"""
    v_mul_f32 v10, v52, v10
    v_mul_f32 v11, v52, v11
    v_mul_f32 v10, s61, v10
    v_mul_f32 v11, 0.15915494, v11
    s_cmp_eq_u32 s57, 0
    s_cbranch_scc1 prep_coarse
    """)

    def cexp(d, mult, t):
        a(f"""
        v_mul_f32 v{t}, {mult}, v10
        v_mul_f32 v{t+1}, {mult}, v11
        v_fract_f32 v{t+1}, v{t+1}
        v_exp_f32 v{t}, v{t}
        v_cos_f32 v{d}, v{t+1}
        v_sin_f32 v{d+1}, v{t+1}
        """)
        return f"v_pk_mul_f32 v[{d}:{d+1}], v[{d}:{d+1}], v[{t}:{t+1}] op_sel:[0,0] op_sel_hi:[1,0]"

    def emit(z, row, t):
        a(f"v_cvt_pk_f16_f32 v{t}, v{z}, v{z+1}")
        a(f"ds_write_b32 v50, v{t} offset:{row*RS}")

    a.c("fine factors E(8j): two chains stepping by E(16)")
    f1 = cexp(66, f2u(8.0), 60)
    f2 = cexp(62, f2u(16.0), 58)
    a(f1)
    a(f2)
    a("v_mov_b32 v56, 0x3c00\nds_write_b32 v50, v56")
    emit(66, 1, 57)
    emit(62, 2, 56)
    ev, od = 62, 66
    pool = [68, 70, 72, 74]
    for j in range(3, 32, 2):
        nod = pool[(j - 3) % 4]
        nev = pool[(j - 2) % 4]
        x1 = cmul(a, nod, od, 62)
        x2 = cmul(a, nev, ev, 62) if j + 1 < 32 else None
        a(x1)
        if x2:
            a(x2)
        emit(nod, j, 57)
        if x2:
            emit(nev, j + 1, 56)
        od, ev = nod, nev
    a("s_branch prep_misc")
    a("prep_coarse:")
    a.c("coarse factors conj(2 S C E(c)); scale from max |C|")
    unpack(a, 54, 55, 8)
    unpack(a, 56, 57, 9)
    a(f"""
    v_max3_f32 v53, abs(v54), abs(v55), abs(v56)
    v_max_f32_e64 v53, abs(v57), v53
    v_mul_f32 v53, v52, v53
    v_sub_f32 v11, 0, v11
    """)
    f1 = cexp(62, "1.0", 58)
    wave_reduce(a, "v_max_f32", [53])
    f2 = cexp(64, f2u(256.0), 60)
    a(f1)
    a(f"""
    v_readlane_b32 s62, v53, 63
    v_mul_f32 v12, v52, v12
    v_mul_f32 v13, v52, v13
    v_frexp_exp_i32_f32 v53, s62
    s_movk_i32 s63, 110
    v_min_i32 v53, s63, v53
    v_max_i32 v53, -100, v53
    v_sub_u32 v54, 7, v53
    v_subrev_u32 v55, 6, v53
    v_ldexp_f32 v54, 1.0, v54
    v_ldexp_f32 v55, 1.0, v55
    """)
    a(f2)
    Z = lambda i: 68 + 2 * i
    a(f"v_mul_f32 v{Z(0)}, v54, v12\nv_mul_f32_e64 v{Z(0)+1}, -v54, v13")
    a(cmul(a, 66, 62, 62))
    order = [(1, 0, 62), (8, 0, 64), (2, 0, 66), (12, 8, 64), (3, 1, 66), (14, 12, 64), (4, 2, 66), (16, 14, 64),
             (5, 3, 66), (17, 16, 64), (6, 4, 66), (18, 17, 64), (7, 5, 66), (19, 18, 64), (9, 2, 64), (20, 19, 64),
             (10, 4, 64), (11, 6, 64), (13, 10, 64), (15, 13, 64)]
    emit(Z(0), 0, 56)
    for i in range(0, 18, 2):
        (d1, z1, w1), (d2, z2, w2) = order[i], order[i + 1]
        x1 = cmul(a, Z(d1), Z(z1), w1)
        x2 = cmul(a, Z(d2), Z(z2), w2)
        a(x1)
        a(x2)
        emit(Z(d1), d1, 57)
        emit(Z(d2), d2, 56)
    for d1, z1, w1 in order[18:]:
        a(cmul(a, Z(d1), Z(z1), w1))
        emit(Z(d1), d1, 56 + (d1 >> 1 & 1))
    a(f"""
    s_lshl_b32 s65, s28, 2
    s_add_u32 s65, s65, {KINV}
    v_mov_b32 v6, s65
    s_mov_b64 exec, 1
    global_store_dword v6, v55, s[24:25]
    s_mov_b64 exec, -1
    prep_misc:
    """)
    st()
    a(f"""
    s_lshl_b32 s64, s33, 4
    s_lshl_b32 s65, s26, 1
    s_add_u32 s64, s64, s65
    s_lshl_b32 s64, s64, 14
    s_lshl_b32 s65, s32, 9
    s_add_u32 s64, s64, s65
    s_add_u32 s64, s64, {XQ0}
    v_lshl_add_u32 v5, v1, 3, s64
    v_add_u32 v6, 16384, v5
    s_waitcnt vmcnt(0)
    global_store_dwordx2 v5, v[14:15], s[24:25] {SC}
    global_store_dwordx2 v6, v[16:17], s[24:25] {SC}
    s_mov_b32 s66, 0x3f803f80
    v_mov_b32 v8, 0
    v_mov_b32 v9, 0
    """)
    for r in range(18, 22):
        a(f"v_dot2c_f32_bf16 v8, s66, v{r}\nv_dot2c_f32_bf16 v9, v{r}, v{r}")
    a(f"""
    s_cmp_eq_u32 s26, 7
    s_cbranch_scc1 prep_zero
    s_mov_b32 s67, 0x05040100
    s_mov_b32 s68, 0x07060302
    """)
    for j in range(4):
        a(f"v_perm_b32 v{52+j}, v{22+2*j+1}, v{22+2*j}, s67")
        a(f"v_perm_b32 v{56+j}, v{22+2*j+1}, v{22+2*j}, s68")
    a(f"""
    v_lshrrev_b32 v5, 5, v1
    v_mul_lo_u32 v5, v5, s48
    v_bfe_u32 v6, v1, 4, 1
    v_mul_lo_u32 v6, v6, s49
    v_and_b32 v7, 15, v1
    v_lshlrev_b32 v7, 5, v7
    v_add3_u32 v5, v5, v6, v7
    v_add_u32 v5, s47, v5
    global_store_dwordx4 v5, v[52:55], s[24:25] {SC}
    global_store_dwordx4 v5, v[56:59], s[24:25] offset:16 {SC}
    s_branch prep_mm
    prep_zero:
    s_lshl_b32 s65, s2, 9
    s_add_u32 s65, s65, {ZB}
    v_lshl_add_u32 v5, v1, 3, s65
    v_mov_b32 v6, 0
    v_mov_b32 v7, 0
    global_store_dwordx2 v5, v[6:7], s[24:25]
    prep_mm:
    s_waitcnt lgkmcnt(0)
    s_barrier
    """)
    st()
    ACC = 112
    for k in range(4):
        a(f"ds_read_b128 v[{64+8*k}:{67+8*k}], v51 offset:{32*k}")
        a(f"ds_read_b128 v[{68+8*k}:{71+8*k}], v51 offset:{32*k+FT}")
    wave_reduce(a, "v_add_f32", [8, 9])
    for k in range(4):
        a(f"s_waitcnt lgkmcnt({6-2*k})")
        c = "0" if k == 0 else f"v[{ACC}:{ACC+15}]"
        a(f"v_mfma_f32_32x32x16_f16 v[{ACC}:{ACC+15}], v[{64+8*k}:{67+8*k}], v[{68+8*k}:{71+8*k}], {c}")
    a(f"""
    s_lshl_b32 s65, s35, 3
    s_add_u32 s65, s65, {ST0}
    v_mov_b32 v5, s65
    s_lshl_b64 exec, 1, 63
    global_store_dwordx2 v5, v[8:9], s[24:25]
    s_mov_b64 exec, -1
    """)
    for r in range(4):
        a(f"ds_write_b32 v40, v{ACC+r} offset:{r*128}")
    for r, ad in enumerate((41, 42, 43, 49)):
        a(f"ds_write_b32 v{ad}, v{ACC+4+r} offset:1024")
    for r in range(4):
        a(f"ds_write_b32 v48, v{ACC+8+r} offset:{4096+r*1024}")
    a("s_waitcnt lgkmcnt(0)\ns_barrier")
    st()
    for q in range(4):
        for e in range(8):
            a(f"ds_read_b32 v{64+8*q+e}, v{30+e} offset:{q*TS}")
    a(f"""
    s_lshl_b32 s65, s28, 12
    s_add_u32 s65, s65, {KR}
    v_and_b32 v7, 255, v0
    v_lshl_add_u32 v5, v7, 4, s65
    s_waitcnt lgkmcnt(0)
    """)
    for e in range(0, 8, 2):
        a(f"v_pk_add_f32 v[{64+e}:{65+e}], v[{64+e}:{65+e}], v[{72+e}:{73+e}]")
        a(f"v_pk_add_f32 v[{80+e}:{81+e}], v[{80+e}:{81+e}], v[{88+e}:{89+e}]")
    for e in range(0, 8, 2):
        a(f"v_pk_add_f32 v[{64+e}:{65+e}], v[{64+e}:{65+e}], v[{80+e}:{81+e}]")
    for e in range(0, 8, 2):
        a(f"v_cvt_pk_f16_f32 v{96+e//2}, v{64+e}, v{65+e}")
    a("global_store_dwordx4 v5, v[96:99], s[24:25]")
    if DIAG:
        a("s_mov_b32 s71, 0")
    st.dump(71, 26, 24)
    a("prep_end:\ns_endpgm")
    lds = TB + 7 * TS + 89 * 128
    assert lds <= 163840, lds
    return kd(name, 128, 72, 128), (name, 256, 512, lds)


def ln_finalize(a, s1, s2, t, c512, eps):
    (a1, b1), (a2, b2) = s1, s2
    a(f"""
    v_mul_f32 v{a1}, {c512}, v{a1}
    v_mul_f32 v{b1}, {c512}, v{b1}
    v_mul_f32 v{a2}, {c512}, v{a2}
    v_mul_f32 v{b2}, {c512}, v{b2}
    v_fma_f32 v{a2}, -v{a1}, v{a1}, v{a2}
    v_fma_f32 v{b2}, -v{b1}, v{b1}, v{b2}
    v_max_f32 v{a2}, 0, v{a2}
    v_max_f32 v{b2}, 0, v{b2}
    v_cvt_pk_bf16_f32 v{t}, v{a1}, v{b1}
    """)
    unpack(a, a1, b1, t)
    a(f"v_cvt_pk_bf16_f32 v{t}, v{a2}, v{b2}")
    unpack(a, a2, b2, t)
    a(f"v_add_f32 v{a2}, {eps}, v{a2}\nv_add_f32 v{b2}, {eps}, v{b2}")
    a(f"v_cvt_pk_bf16_f32 v{t}, v{a2}, v{b2}")
    unpack(a, a2, b2, t)
    a(f"v_sqrt_f32 v{a2}, v{a2}\nv_sqrt_f32 v{b2}, v{b2}")
    a(f"v_cvt_pk_bf16_f32 v{t}, v{a2}, v{b2}")
    unpack(a, a2, b2, t)
    a(f"v_rcp_f32 v{a2}, v{a2}\nv_rcp_f32 v{b2}, v{b2}")


def gen_mega(a):
    E = lambda k, d: int(os.environ.get(k, d))
    KCS = 4160
    UB = 8 * KCS
    US = 7680
    YB = UB + 2 * US
    YS = 9216
    LDS = 131072
    assert YB + 4 * YS <= LDS
    W1V = 160
    CSF = 156
    w1r = lambda s: f"v[{W1V+4*s}:{W1V+4*s+3}]" if s < 24 else f"a[{224+4*(s-24)}:{227+4*(s-24)}]"
    SLP = E('SLP', 2)

    head(a, "main_kernel")
    a("s_cmp_ge_u32 s2, 256\ns_cbranch_scc1 main_end")
    st = Stamper(a)
    st.start()
    a(f"""
    s_load_dwordx2 s[8:9], s[0:1], 96
    s_load_dwordx2 s[6:7], s[0:1], 80
    s_load_dwordx2 s[4:5], s[0:1], 48
    v_and_b32 v1, 63, v0
    v_lshrrev_b32 v2, 6, v0
    v_readfirstlane_b32 s10, v2
    s_and_b32 s50, s2, 7
    s_lshl_b32 s11, s50, 1
    s_lshl_b32 s50, s50, 5
    s_lshr_b32 s12, s2, 3
    s_or_b32 s50, s50, s12
    s_lshr_b32 s12, s2, 7
    s_add_u32 s11, s11, s12
    s_bfe_u32 s12, s2, 0x40003
    s_lshl_b32 s13, s12, 2
    s_add_u32 s13, s13, s10
    s_min_u32 s13, s13, 55
    s_and_b32 s35, s12, 1
    s_lshl_b32 s32, s11, 1
    s_add_u32 s32, s32, s35
    s_lshr_b32 s33, s12, 1
    s_lshl_b32 s46, s33, 6
    s_lshl_b32 s38, s10, 4
    s_add_u32 s46, s46, s38
    s_mul_i32 s28, s33, {BLK}
    s_mul_i32 s14, s10, {28*2048}
    s_add_u32 s28, s28, s14
    s_add_u32 s28, s28, {W2S}
    s_mul_i32 s42, s32, {BLK}
    s_add_u32 s42, s42, s14
    s_add_u32 s42, s42, {HH}
    s_lshl_b32 s22, s13, 15
    s_add_u32 s22, s22, {W1S}
    s_mul_i32 s40, s11, {2*BLK}
    s_lshl_b32 s38, s13, 12
    s_add_u32 s40, s40, s38
    s_add_u32 s40, s40, {HH}
    s_mov_b32 s18, 0x200000
    s_mov_b32 s19, 0x20000
    s_mov_b32 s51, 0
    s_mov_b32 s3, {XT1}
    s_mov_b32 s56, {XQ0}
    s_mov_b32 s57, {ST0}
    s_mov_b32 s36, {GR1}
    s_mov_b32 s58, {CN1}
    s_lshl_b32 s14, s50, 2
    s_lshl_b32 s15, s50, 3
    s_add_u32 s15, s15, {KINV}
    v_lshlrev_b32 v154, 4, v1
    v_mov_b32 v155, v154
    s_waitcnt lgkmcnt(0)
    s_load_dword s52, s[4:5], s14
    s_load_dwordx2 s[54:55], s[8:9], s15
    """)
    a.c("s10 wave, s50 channel pair, s11 row block, s12 member, s13 f tile, s35 parity, s32 lb, s33 db, s46 first output d, s51 iteration")
    for r in (22, 28, 40, 42):
        a(f"s_add_u32 s{r}, s8, s{r}\ns_addc_u32 s{r+1}, s9, 0")

    wn = [0]

    def wload():
        i = wn[0]
        if i < 32:
            a(f"global_load_dwordx4 {w1r(i)}, v154, s[22:23] offset:{(i&3)*1024}")
            if i & 3 == 3:
                a("v_add_u32 v154, 4096, v154")
        else:
            j = i - 32
            a(f"global_load_dwordx4 a[{4*j}:{4*j+3}], v155, s[28:29] offset:{(j&3)*1024}")
            if j & 3 == 3:
                a("v_add_u32 v155, 4096, v155")
        wn[0] += 1

    def wblock(n):
        n = min(n, 88 - wn[0])
        if n <= 0:
            return
        lab = f"wl{wn[0]}"
        a(f"s_cmp_lg_u32 s51, 0\ns_cbranch_scc1 {lab}")
        for _ in range(n):
            wload()
        a(f"{lab}:")

    a("main_loop:")
    a.c("K loads (both channels), addresses, zero fills: nothing here depends on the previous phase")
    a(f"""
    s_lshl_b32 s14, s50, 13
    s_add_u32 s14, s14, {KR}
    v_lshl_add_u32 v6, v0, 4, s14
    v_add_u32 v7, 4096, v6
    global_load_dwordx4 v[128:131], v6, s[8:9]
    global_load_dwordx2 v[132:133], v6, s[8:9] offset:16
    global_load_dwordx4 v[134:137], v7, s[8:9]
    global_load_dwordx2 v[138:139], v7, s[8:9] offset:16
    s_lshr_b32 s14, s50, 1
    s_lshl_b32 s14, s14, 14
    s_and_b32 s15, s50, 1
    s_lshl_b32 s15, s15, 2
    s_add_u32 s14, s14, s15
    s_add_u32 s14, s14, s56
    v_lshlrev_b32 v3, 5, v0
    v_add_u32 v4, s14, v3
    v_add_u32 v5, s57, v3
    v_add_u32 v6, 0x2000, v4
    v_add_u32 v7, 0x2000, v5
    s_cmp_lg_u32 s51, 0
    s_cbranch_scc1 conv_nold
    """)

    def conv_loads():
        a("""
        global_load_dwordx4 v[32:35], v5, s[8:9] sc1
        global_load_dwordx4 v[36:39], v5, s[8:9] offset:16 sc1
        global_load_dwordx4 v[16:19], v4, s[8:9] sc1
        global_load_dwordx4 v[20:23], v4, s[8:9] offset:16 sc1
        global_load_dwordx4 v[40:43], v7, s[8:9] sc1
        global_load_dwordx4 v[44:47], v7, s[8:9] offset:16 sc1
        global_load_dwordx4 v[24:27], v6, s[8:9] sc1
        global_load_dwordx4 v[28:31], v6, s[8:9] offset:16 sc1
        """)
    conv_loads()
    a(f"""
    conv_nold:
    v_mov_b32 v8, 0
    v_mov_b32 v9, 0
    v_mov_b32 v10, 0
    v_mov_b32 v11, 0
    v_lshlrev_b32 v2, 4, v0
    v_add_u32 v12, {UB}, v2
    v_cmp_gt_u32 vcc, 160, v0
    s_and_saveexec_b64 s[20:21], vcc
    ds_write_b128 v12, v[8:11]
    ds_write_b128 v12, v[8:11] offset:{US}
    s_mov_b64 exec, s[20:21]
    v_lshrrev_b32 v12, 2, v0
    v_mul_u32_u24 v12, {KCS}, v12
    v_and_b32 v13, 3, v0
    v_lshl_add_u32 v12, v13, 4, v12
    v_cmp_gt_u32 vcc, 32, v0
    s_and_saveexec_b64 s[20:21], vcc
    ds_write_b128 v12, v[8:11] offset:4096
    s_mov_b64 exec, s[20:21]
    s_movk_i32 s24, 255
    v_cmp_eq_u32 s[20:21], s24, v0
    """)
    a.c("v2 = K copy write, v13 = U write, v14 = Y read, v15 = out store; v8 = A read, v9 = B read, v10 = Y write; v11 = flag poll")
    a(f"""
    v_lshrrev_b32 v12, 3, v0
    v_and_b32 v3, 7, v0
    v_mul_u32_u24 v13, 80, v12
    v_lshl_add_u32 v13, v3, 3, v13
    v_add_u32 v13, {UB + 32*80}, v13
    v_mul_u32_u24 v14, 144, v12
    v_lshl_add_u32 v14, v3, 4, v14
    v_add_u32 v14, {YB}, v14
    s_lshl_b32 s14, s50, 13
    s_add_u32 s14, s14, s3
    v_lshl_add_u32 v15, v0, 3, s14
    v_and_b32 v12, 31, v1
    v_lshrrev_b32 v3, 5, v1
    s_and_b32 s24, s10, 1
    s_lshr_b32 s25, s10, 1
    v_and_b32 v8, 3, v12
    v_sub_u32 v8, 3, v8
    v_mul_u32_u24 v8, {KCS}, v8
    v_and_b32 v9, 28, v12
    v_lshlrev_b32 v9, 1, v9
    v_sub_u32 v8, v8, v9
    v_lshl_add_u32 v8, v3, 4, v8
    s_mul_i32 s26, s25, {4*KCS}
    s_lshl_b32 s27, s24, 5
    s_add_u32 s26, s26, s27
    s_add_u32 s26, s26, 56
    v_add_u32 v8, s26, v8
    v_mul_u32_u24 v9, 80, v12
    v_lshl_add_u32 v9, v3, 4, v9
    s_mul_i32 s26, s25, {US}
    s_add_u32 s26, s26, s27
    s_add_u32 s26, s26, {UB + 80}
    v_add_u32 v9, s26, v9
    v_mul_u32_u24 v10, 144, v12
    v_lshl_add_u32 v10, v3, 4, v10
    s_mul_i32 s26, s10, {YS}
    s_add_u32 s26, s26, {YB}
    v_add_u32 v10, s26, v10
    v_lshlrev_b32 v11, 7, v0
    v_add_u32 v11, {BF}, v11
    s_cmp_lg_u32 s51, 0
    s_cbranch_scc1 conv_kw0
    s_waitcnt vmcnt(8)
    s_branch conv_kw1
    conv_kw0:
    s_waitcnt vmcnt(0)
    conv_kw1:
    """)
    for c in range(2):
        w = 128 + 6 * c
        o = c * 4 * KCS
        a(f"v_cndmask_b32 v{w+4}, v{w+4}, 0, s[20:21]\nv_cndmask_b32 v{w+5}, v{w+5}, 0, s[20:21]")
        a(f"ds_write_b128 v2, v[{w}:{w+3}] offset:{o}")
        for i in range(4):
            a(f"v_alignbit_b32 v{140+i}, v{w+1+i}, v{w+i}, 16")
        a(f"ds_write_b128 v2, v[140:143] offset:{o+KCS}")
        for i in range(4):
            a(f"v_alignbit_b32 v{144+i}, v{w+2+i}, v{w+1+i}, 16")
        a(f"ds_write_b128 v2, v[144:147] offset:{o+3*KCS}")
        for i in range(4):
            a(f"v_mov_b32 v{148+i}, v{w+1+i}")
        a(f"ds_write_b128 v2, v[148:151] offset:{o+2*KCS}")
        if c == 0:
            a("s_waitcnt lgkmcnt(0)")
    a.c("second iteration: wait until every workgroup has published x2 and its row sums")
    a(f"""
    s_cmp_eq_u32 s51, 0
    s_cbranch_scc1 conv_first
    conv_pollA:
    s_sleep {SLP}
    global_load_dword v12, v11, s[8:9] sc1
    s_waitcnt vmcnt(0)
    v_cmp_gt_u32 vcc, 2, v12
    s_and_b64 exec, exec, vcc
    s_cbranch_execnz conv_pollA
    s_mov_b64 exec, -1
    s_barrier
    """)
    conv_loads()
    a("s_branch conv_go\nconv_first:")
    a("s_lshl_b32 s24, s52, 16\ns_and_b32 s53, s52, 0xffff0000\ns_mov_b32 s52, s24")
    a("conv_go:")
    st()
    a(f"s_mov_b32 s26, {f2u(1.0/512)}\ns_mov_b32 s27, {f2u(1e-5)}")
    XF, UD = 96, 112
    for q in range(2):
        S = 32 + 8 * q
        X = 16 + 8 * q
        xf, ud = XF + 8 * q, UD + 8 * q
        a(f"s_waitcnt vmcnt({6 - 4*q})")
        ln_finalize(a, (S, S + 2), (S + 1, S + 3), 48, "s26", "s27")
        ln_finalize(a, (S + 4, S + 6), (S + 5, S + 7), 49, "s26", "s27")
        a(f"s_waitcnt vmcnt({4 - 4*q})")
        if q == 1:
            wblock(E('LW', 8))
        for k in range(4):
            unpack(a, xf + 2 * k, xf + 1 + 2 * k, X + 2 * k)
        for k in range(4):
            a(f"v_pk_add_f32 v[{ud+2*k}:{ud+1+2*k}], v[{xf+2*k}:{xf+1+2*k}], v[{S+2*k}:{S+1+2*k}] op_sel:[0,0] op_sel_hi:[1,0] neg_lo:[0,1] neg_hi:[0,1]")
        for k in range(4):
            a(f"v_cvt_pk_bf16_f32 v{X+k}, v{ud+2*k}, v{ud+1+2*k}")
        for k in range(4):
            unpack(a, ud + 2 * k, ud + 1 + 2 * k, X + k)
        for k in range(4):
            a(f"v_pk_mul_f32 v[{ud+2*k}:{ud+1+2*k}], v[{ud+2*k}:{ud+1+2*k}], v[{S+2*k}:{S+1+2*k}] op_sel:[0,1] op_sel_hi:[1,1]")
        for k in range(4):
            a(f"v_cvt_pk_bf16_f32 v{X+k}, v{ud+2*k}, v{ud+1+2*k}")
        for k in range(4):
            unpack(a, ud + 2 * k, ud + 1 + 2 * k, X + k)
        a(f"""
        v_cvt_pk_f16_f32 v{X+4}, v{ud}, v{ud+2}
        v_cvt_pk_f16_f32 v{X+5}, v{ud+4}, v{ud+6}
        v_cvt_pk_f16_f32 v{X+6}, v{ud+1}, v{ud+3}
        v_cvt_pk_f16_f32 v{X+7}, v{ud+5}, v{ud+7}
        ds_write_b64 v13, v[{X+4}:{X+5}] offset:{q*2560}
        ds_write_b64 v13, v[{X+6}:{X+7}] offset:{US+q*2560}
        """)
    a("s_waitcnt lgkmcnt(0)\ns_barrier")
    st()
    ACC0, ACC1 = 64, 80
    NB, BUF = 3, 16

    def reads(d, part):
        if d >= 32:
            return
        b = BUF + 16 * (d % NB)
        o1 = 64 * (63 - d)
        o2 = 64 * (63 - d - 32)
        if part == 0:
            a(f"ds_read_b64 v[{b}:{b+1}], v8 offset:{o1}")
            a(f"ds_read_b64 v[{b+2}:{b+3}], v8 offset:{o1+8}")
        elif part == 1:
            a(f"ds_read_b128 v[{b+8}:{b+11}], v9 offset:{80*(31-d)}")
            a(f"ds_read_b128 v[{b+12}:{b+15}], v9 offset:{80*(31-d)+2560}")
        else:
            a(f"ds_read_b64 v[{b+4}:{b+5}], v8 offset:{o2}")
            a(f"ds_read_b64 v[{b+6}:{b+7}], v8 offset:{o2+8}")

    fill = []
    for k in range(16):
        fill.append(f"v_mul_f32 v{UD+k}, s{52+(k&1)}, v{UD+k}")
    for k in range(8):
        fill.append(f"v_cvt_pk_bf16_f32 v{128+k}, v{UD+2*k}, v{UD+2*k+1}")
    for k in range(8):
        fill.append(f"v_lshlrev_b32 v{UD+2*k}, 16, v{128+k}")
        fill.append(f"v_and_b32 v{UD+2*k+1}, 0xffff0000, v{128+k}")
    for d in range(2):
        for p in range(3):
            reads(d, p)
    CWB = {d: E('CWN', 2) for d in range(0, E('CWE', 31), 2)}
    for d in range(32):
        a(f"s_waitcnt lgkmcnt({6 if d < 31 else 0})")
        b = BUF + 16 * (d % NB)
        c0 = "0" if d == 0 else f"v[{ACC0}:{ACC0+15}]"
        c1 = "0" if d == 0 else f"v[{ACC1}:{ACC1+15}]"
        a(f"v_mfma_f32_32x32x16_f16 v[{ACC1}:{ACC1+15}], v[{b}:{b+3}], v[{b+12}:{b+15}], {c1}")
        reads(d + 2, 0)
        if d in CWB:
            wblock(CWB[d])
        a(f"v_mfma_f32_32x32x16_f16 v[{ACC0}:{ACC0+15}], v[{b}:{b+3}], v[{b+8}:{b+11}], {c0}")
        reads(d + 2, 1)
        for _ in range(2):
            if fill:
                a(fill.pop(0))
        a(f"v_mfma_f32_32x32x16_f16 v[{ACC1}:{ACC1+15}], v[{b+4}:{b+7}], v[{b+8}:{b+11}], v[{ACC1}:{ACC1+15}]")
        reads(d + 2, 2)
    assert not fill
    for g in range(4):
        a(f"ds_write_b128 v10, v[{ACC0+4*g}:{ACC0+4*g+3}] offset:{32*g}")
    for g in range(4):
        a(f"ds_write_b128 v10, v[{ACC1+4*g}:{ACC1+4*g+3}] offset:{32*g+32*144}")
    a("s_waitcnt lgkmcnt(0)\ns_barrier")
    st()
    for q in range(2):
        for w in range(4):
            a(f"ds_read_b128 v[{16+16*q+4*w}:{19+16*q+4*w}], v14 offset:{w*YS + q*32*144}")
    a("v_add_u32 v12, 4096, v15")
    for q in range(2):
        for c in range(2):
            y = 16 + 16 * q + 8 * c
            a(f"s_waitcnt lgkmcnt({6 - 4*q - 2*c})")
            for k in range(0, 4, 2):
                a(f"v_pk_add_f32 v[{y+k}:{y+k+1}], v[{y+k}:{y+k+1}], v[{y+4+k}:{y+5+k}]")
            for k in range(0, 4, 2):
                a(f"v_pk_mul_f32 v[{y+k}:{y+k+1}], v[{y+k}:{y+k+1}], s[54:55] op_sel:[0,{c}] op_sel_hi:[1,{c}]")
            for k in range(0, 4, 2):
                a(f"v_cvt_pk_bf16_f32 v{y+4+k}, v{y+k}, v{y+k+1}")
            for k in range(0, 4, 2):
                unpack(a, y + k, y + k + 1, y + 4 + k)
            for k in range(4):
                a(f"v_add_f32 v{y+k}, v{y+k}, v{UD+8*q+2*k+c}")
            for k in range(0, 4, 2):
                a(f"v_cvt_pk_bf16_f32 v{y+4+k}, v{y+k}, v{y+k+1}")
            for k in range(0, 4, 2):
                unpack(a, y + k, y + k + 1, y + 4 + k)
            for k in range(4):
                a(f"v_add_f32 v{y+k}, v{y+k}, v{XF+8*q+2*k+c}")
            a(f"v_cvt_pk_bf16_f32 v{y+4}, v{y}, v{y+1}\nv_cvt_pk_bf16_f32 v{y+5}, v{y+2}, v{y+3}")
            a(f"global_store_dwordx2 v{15 if c == 0 else 12}, v[{y+4}:{y+5}], s[8:9] offset:{2048*q} sc1")

    AF, ACC, BB = 128, 64, 32
    a(f"""
    s_add_u32 s16, s8, s3
    s_addc_u32 s17, s9, 0
    s_lshl_b32 s24, s11, 11
    s_add_u32 s24, s24, s58
    s_lshl_b32 s14, s12, 7
    s_add_u32 s14, s14, s24
    v_mov_b32 v14, s14
    s_mul_i32 s14, s10, 7
    s_lshr_b32 s14, s14, 1
    s_lshl_b32 s14, s14, 7
    s_add_u32 s14, s14, s24
    v_and_b32 v15, 3, v1
    v_lshl_add_u32 v15, v15, 7, s14
    v_lshlrev_b32 v7, 4, v1
    s_lshl_b32 s14, s50, 7
    s_add_u32 s14, s14, {BF}
    v_mov_b32 v30, s14
    s_lshl_b32 s59, s51, 1
    s_add_u32 s59, s59, 1
    v_mov_b32 v31, s59
    s_waitcnt vmcnt(0)
    s_barrier
    s_cmp_lg_u32 s10, 0
    s_cbranch_scc1 conv_nosig
    s_mov_b64 exec, 1
    global_store_dword v30, v31, s[8:9] sc1
    s_mov_b64 exec, -1
    conv_nosig:
    """)
    st()
    assert wn[0] >= 32
    wblock(E('WB0', 16))
    a("s_cmp_ge_u32 s12, 14\ns_cbranch_scc1 ffn_helper")
    a.c("first iteration: column sums of the resident W1 tile -> three bf16 terms")
    a(f"""
    s_cmp_lg_u32 s51, 0
    s_cbranch_scc1 ffn_nocs
    s_mov_b32 s25, 0x3f803f80
    v_mov_b32 v2, 0
    v_mov_b32 v3, 0
    """)
    for r in range(W1V, 256, 2):
        a(f"v_dot2c_f32_bf16 v2, s25, v{r}\nv_dot2c_f32_bf16 v3, s25, v{r+1}")
    for r in range(32):
        a(f"v_accvgpr_read_b32 v{32+r}, a{224+r}")
    for r in range(32, 64, 2):
        a(f"v_dot2c_f32_bf16 v2, s25, v{r}\nv_dot2c_f32_bf16 v3, s25, v{r+1}")
    a(f"""
    v_add_f32 v2, v2, v3
    v_cvt_pk_bf16_f32 v3, v2, v2
    v_lshlrev_b32 v3, 16, v3
    v_sub_f32 v2, v2, v3
    v_cvt_pk_bf16_f32 v4, v2, v2
    v_lshlrev_b32 v4, 16, v4
    v_sub_f32 v2, v2, v4
    v_cvt_pk_bf16_f32 v{CSF}, v3, v4
    v_cvt_pk_bf16_f32 v{CSF+1}, v2, 0
    v_mov_b32 v{CSF+2}, 0
    v_mov_b32 v{CSF+3}, 0
    ffn_nocs:
    """)
    a.c("v4 DMA offset; v8..v11 tr-read; v12 granules; v28/v29 residual; v13 flag poll")
    a(f"""
    v_lshrrev_b32 v2, 4, v1
    v_and_b32 v3, 15, v1
    v_lshlrev_b32 v4, 2, v2
    v_xor_b32 v4, v4, v3
    v_lshlrev_b32 v4, 4, v4
    v_lshl_add_u32 v4, v2, 12, v4
    s_lshl_b32 s14, s11, 8
    v_add_u32 v4, s14, v4
    s_lshl_b32 s20, s10, 14
    s_lshl_b32 s21, s10, 10
    v_bfe_u32 v2, v1, 2, 2
    v_lshlrev_b32 v12, 8, v2
    v_bfe_u32 v3, v1, 4, 1
    v_lshl_add_u32 v12, v3, 5, v12
    v_and_b32 v3, 3, v1
    v_lshl_add_u32 v12, v3, 3, v12
    v_lshrrev_b32 v3, 5, v1
    v_lshl_add_u32 v28, v3, 10, v12
    v_lshl_add_u32 v12, v3, 11, v12
    """)
    for t in range(4):
        a(f"v_xor_b32 v3, {t}, v2\nv_lshl_add_u32 v{8+t}, v3, 6, v12")
    a(f"""
    s_lshl_b32 s24, s46, 8
    v_add_u32 v28, s24, v28
    v_xor_b32 v3, s35, v2
    v_xor_b32 v2, 2, v3
    v_lshl_add_u32 v29, v2, 6, v28
    v_lshl_add_u32 v28, v3, 6, v28
    v_and_b32 v2, 31, v1
    s_lshl_b32 s14, s11, 10
    s_add_u32 s14, s14, s36
    v_lshl_add_u32 v12, v2, 3, s14
    v_lshrrev_b32 v2, 1, v1
    v_lshlrev_b32 v13, 10, v2
    v_and_b32 v2, 1, v1
    v_lshl_add_u32 v13, v2, 7, v13
    s_lshl_b32 s14, s10, 8
    s_add_u32 s14, s14, {BF}
    v_add_u32 v13, s14, v13
    """)

    def pollB(tag):
        a(f"""
        ffn_pollB{tag}:
        s_sleep {SLP}
        global_load_dword v2, v13, s[8:9] sc1
        s_waitcnt vmcnt(0)
        v_cmp_gt_u32 vcc, s59, v2
        s_and_b64 exec, exec, vcc
        s_cbranch_execnz ffn_pollB{tag}
        s_mov_b64 exec, -1
        """)
    pollB("p")
    st()
    CH = E('FCH', 2)
    GS = E('GS', 23)
    vm = Vm(a)

    def ld_x(s):
        a(f"s_add_u32 m0, s21, {s*4096}")
        a(f"s_add_u32 s24, s20, {s*65536}")
        vm.issue("buffer_load_dwordx4 v4, s[16:19], s24 offen sc1 lds", f"c{s//CH}")

    D = E('FD', 12)
    for s in range(D):
        ld_x(s)

    def rd(s, t):
        if s >= 32:
            return
        b = BB + 16 * (s & 1)
        if s == 16:
            a(f"v_add_u32 v{8+t}, 0x10000, v{8+t}")
        o = (s & 15) * 4096
        a(f"ds_read_b64_tr_b16 v[{b+4*t}:{b+4*t+1}], v{8+t} offset:{o}")
        a(f"ds_read_b64_tr_b16 v[{b+4*t+2}:{b+4*t+3}], v{8+t} offset:{o+1024}")

    def gran_loads(v):
        for t in range(4):
            v.issue(f"global_load_dwordx2 v[{16+2*t}:{17+2*t}], v12, s[8:9] offset:{256*t} sc1", "gr")

    vm.wait("c0")
    a("s_barrier")
    st()
    for t in range(4):
        rd(0, t)
    wn_conv = wn[0]
    xn = [D]
    XL = E('XL', 16)
    GWB = {s_: E('GWN', 4) for s_ in range(XL - 1, GS + 1, 2)}
    for s in range(32):
        b = BB + 16 * (s & 1)
        for t in range(4):
            a(f"s_waitcnt lgkmcnt({6 if s < 31 else 6 - 2*t})")
            cc = "0" if s == 0 else f"v[{ACC+16*t}:{ACC+16*t+15}]"
            a(f"v_mfma_f32_32x32x16_bf16 v[{ACC+16*t}:{ACC+16*t+15}], {w1r(s)}, v[{b+4*t}:{b+4*t+3}], {cc}")
            if t == 0 and (s + 1) % CH == 0 and s + 1 <= XL:
                if s + 1 == XL:
                    assert xn[0] == 32
                    vm.wait(f"c{31//CH}")
                else:
                    vm.wait(f"c{(s+1)//CH}")
                a("s_barrier")
            rd(s + 1, t)
            if t in (1, 3) and xn[0] < 32:
                ld_x(xn[0])
                xn[0] += 1
            if t == 2 and s in GWB:
                wblock(GWB[s])
            if t == 3 and s == GS:
                gran_loads(vm)
    st()
    vm.wait("gr")
    a("""
    ffn_chk:
    v_min_u32 v2, v17, v19
    v_min3_u32 v2, v2, v21, v23
    v_cmp_eq_u32 vcc, 0, v2
    s_cbranch_vccnz ffn_retry
    """)
    a(f"s_mov_b32 s26, {f2u(-LOG2E)}")
    for t in range(4):
        for k in range(2):
            a(f"v_mov_b32 v{32+4*t+k}, v{16+2*t}")
        b = 32 + 4 * t
        a(f"v_rcp_f32 v{16+2*t}, v{17+2*t}")
        a(f"v_mov_b32 v{b+2}, 0\nv_mov_b32 v{b+3}, 0")
        a(f"v_mfma_f32_32x32x16_bf16 v[{ACC+16*t}:{ACC+16*t+15}], v[{CSF}:{CSF+3}], v[{b}:{b+3}], v[{ACC+16*t}:{ACC+16*t+15}]")
    a.c("residual (packed bf16, D layout): v56..59 pass 0, v60..63 pass 1")
    for p in range(2):
        for g in range(2):
            a(f"ds_read_b64_tr_b16 v[{56+4*p+2*g}:{57+4*p+2*g}], v{28+p} offset:{g*2048}")
    for t in range(4):
        a(f"v_mul_f32 v{16+2*t}, s26, v{16+2*t}")
    a(f"v_lshlrev_b32 v12, 4, v1\nv_add_u32 v13, {BLK}, v12")
    OUTR = (128, 136, 144, 48)
    for t in range(4):
        A0 = ACC + 16 * t
        R = 16 + 2 * t
        TT = 32
        O = OUTR[t]
        for k in range(0, 16, 2):
            a(f"v_pk_mul_f32 v[{TT+k}:{TT+k+1}], v[{A0+k}:{A0+k+1}], v[{R}:{R+1}] op_sel:[0,0] op_sel_hi:[1,0]")
        for k in range(16):
            a(f"v_exp_f32 v{TT+k}, v{TT+k}")
        wblock(E('SW', 5))
        for k in range(0, 16, 2):
            a(f"v_pk_fma_f32 v[{TT+k}:{TT+k+1}], v[{TT+k}:{TT+k+1}], v[{R}:{R+1}], v[{R}:{R+1}] op_sel:[0,1,1] op_sel_hi:[1,1,1]")
        for k in range(16):
            a(f"v_rcp_f32 v{TT+k}, v{TT+k}")
        for k in range(0, 16, 2):
            a(f"v_pk_mul_f32 v[{A0+k}:{A0+k+1}], v[{A0+k}:{A0+k+1}], v[{TT+k}:{TT+k+1}]")
        for k in range(0, 16, 2):
            a(f"v_cvt_pk_bf16_f32 v{O+k//2}, v{A0+k}, v{A0+k+1}")
        ad = 12 + (t & 1)
        vm.issue(f"global_store_dwordx4 v{ad}, v[{O}:{O+3}], s[40:41] offset:{(t>>1)*1024} sc1", f"h{t>>1}")
        vm.issue(f"global_store_dwordx4 v{ad}, v[{O+4}:{O+7}], s[40:41] offset:{(t>>1)*1024+2048} sc1", f"h{t>>1}")
    st()

    assert wn[0] == 88, wn[0]

    def g2_setup(tag):
        a.c("v3 = l (pass 0), v4 = half; residual -> f32 v16..31")
        a(f"""
        v_and_b32 v3, 31, v1
        v_lshrrev_b32 v4, 5, v1
        s_lshl_b32 s24, s11, 7
        s_lshl_b32 s38, s35, 5
        s_add_u32 s24, s24, s38
        v_add_u32 v3, s24, v3
        s_waitcnt lgkmcnt(0)
        """)
        for k in range(8):
            unpack(a, 16 + 2 * k, 17 + 2 * k, 56 + k)
        a.c("output addressing: s[44:45] base, v8 offset (pass 0), s47 = step between the two g groups, s30 = step to pass 1; v9 stats")
        a(f"""
        s_cmp_eq_u32 s51, 1
        s_cbranch_scc1 ffn_oa1{tag}
        s_lshl_b32 s24, s46, 12
        s_add_u32 s24, s24, {XQ2}
        s_add_u32 s44, s8, s24
        s_addc_u32 s45, s9, 0
        v_lshlrev_b32 v8, 14, v4
        v_lshl_add_u32 v8, v3, 3, v8
        s_mov_b32 s47, 0x8000
        s_movk_i32 s30, 512
        s_branch ffn_oa2{tag}
        ffn_oa1{tag}:
        s_lshl_b32 s24, s46, 1
        s_add_u32 s44, s6, s24
        s_addc_u32 s45, s7, 0
        v_lshlrev_b32 v8, 3, v4
        v_lshl_add_u32 v8, v3, 10, v8
        s_mov_b32 s47, 16
        s_mov_b32 s30, 0x10000
        ffn_oa2{tag}:
        v_lshlrev_b32 v9, 2, v4
        v_lshl_add_u32 v9, v3, 3, v9
        v_add_u32 v9, {ST2}, v9
        v_lshlrev_b32 v10, 4, v1
        s_lshl_b32 s24, s10, 13
        v_add_u32 v11, s24, v10
        s_lshl_b32 s24, s10, 11
        v_add_u32 v10, s24, v10
        """)

    def signal(ph):
        vm.wait(f"h{ph}")
        a(f"""
        s_barrier
        s_cmp_lg_u32 s10, {ph}
        s_cbranch_scc1 ffn_nosig{ph}
        s_mov_b64 exec, 1
        global_store_dword v14, v2, s[8:9] offset:{4*ph} sc1
        s_mov_b64 exec, -1
        ffn_nosig{ph}:
        """)

    a("v_mov_b32 v2, 1\ns_waitcnt lgkmcnt(0)")
    signal(0)
    g2_setup("p")
    signal(1)
    st()
    a("""
    ffn_sync:
    s_mov_b64 exec, 15
    ffn_poll0:
    global_load_dword v12, v15, s[8:9] sc1
    s_waitcnt vmcnt(0)
    v_cmp_eq_u32 vcc, 0, v12
    s_cbranch_vccnz ffn_poll0
    s_mov_b64 exec, -1
    """)
    st()
    vm = Vm(a)
    RING = list(range(32, 64, 4)) + list(range(128, 152, 4))
    slot = lambda i: RING[i % len(RING)]

    def ld_h(i):
        if i >= 56:
            return
        p, k = divmod(i, 28)
        if i == 28:
            a(f"v_subrev_u32 v7, {14*4096}, v7")
        vm.issue(f"global_load_dwordx4 v[{slot(i)}:{slot(i)+3}], v7, s[42:43] offset:{(k&1)*2048+p*1024} sc1", f"h{i}")
        if k & 1:
            a("v_add_u32 v7, 4096, v7")

    def finish(p):
        A = ACC + 32 * p
        L = []
        for i in range(8):
            L.append(f"ds_write_b128 v11, v[{A+4*i}:{A+4*i+3}] offset:{p*32768 + i*1024}")
        L.append("s_waitcnt lgkmcnt(0)\ns_barrier")
        for src in range(4):
            for g in range(2):
                r = A + 8 * src + 4 * g
                L.append(f"ds_read_b128 v[{r}:{r+3}], v10 offset:{p*32768 + src*8192 + g*1024}")
        L.append("s_nop 0")
        L.append("s_nop 0")
        L.append("s_waitcnt lgkmcnt(4)")
        for k in range(8):
            L.append(f"v_add_f32 v{A+k}, v{A+k}, v{A+8+k}")
        L.append("s_waitcnt lgkmcnt(0)")
        for k in range(8):
            L.append(f"v_add_f32 v{A+16+k}, v{A+16+k}, v{A+24+k}")
        for k in range(8):
            L.append(f"v_add_f32 v{A+k}, v{A+k}, v{A+16+k}")
        for k in range(4):
            L.append(f"v_cvt_pk_bf16_f32 v{A+8+k}, v{A+2*k}, v{A+2*k+1}")
        for k in range(4):
            L.append(f"v_lshlrev_b32 v{A+2*k}, 16, v{A+8+k}")
            L.append(f"v_and_b32 v{A+2*k+1}, 0xffff0000, v{A+8+k}")
        for k in range(8):
            L.append(f"v_add_f32 v{A+k}, v{A+k}, v{16+8*p+k}")
        for k in range(4):
            L.append(f"v_cvt_pk_bf16_f32 v{A+8+k}, v{A+2*k}, v{A+2*k+1}")
        L.append(f"v_add_u32 v{A+12}, s47, v8")
        L.append(("st", A))
        for k in range(4):
            L.append(f"v_lshlrev_b32 v{A+2*k}, 16, v{A+8+k}")
            L.append(f"v_and_b32 v{A+2*k+1}, 0xffff0000, v{A+8+k}")
        L.append(f"v_mul_f32 v{A+17}, v{A}, v{A}")
        L.append(f"v_add_f32 v{A+16}, v{A}, v{A+1}")
        L.append(f"v_fmac_f32 v{A+17}, v{A+1}, v{A+1}")
        for k in range(2, 8):
            L.append(f"v_add_f32 v{A+16}, v{A+16}, v{A+k}")
            L.append(f"v_fmac_f32 v{A+17}, v{A+k}, v{A+k}")
        L.append(f"v_permlane32_swap_b32 v{A+16}, v{A+17}")
        L.append(f"v_add_f32 v{A+16}, v{A+16}, v{A+17}")
        L.append(("at", f"global_atomic_add_f32 v9, v{A+16}, s[8:9] offset:{512*p}"))
        return L

    def put(x, p):
        if isinstance(x, tuple):
            if x[0] == "st":
                A = x[1]
                a(f"s_cmp_eq_u32 s51, 1\ns_cbranch_scc1 ffn_so{p}")
                a(f"global_store_dwordx2 v8, v[{A+8}:{A+9}], s[44:45] sc1")
                a(f"global_store_dwordx2 v{A+12}, v[{A+10}:{A+11}], s[44:45] sc1")
                a(f"s_branch ffn_sp{p}\nffn_so{p}:")
                vm.issue(f"global_store_dwordx2 v8, v[{A+8}:{A+9}], s[44:45]", "o")
                vm.issue(f"global_store_dwordx2 v{A+12}, v[{A+10}:{A+11}], s[44:45]", "o")
                if p == 1:
                    a("s_branch main_done")
                a(f"ffn_sp{p}:")
            else:
                a(f"s_cmp_eq_u32 s51, 1\ns_cbranch_scc1 ffn_noat{p}")
                a(x[1])
                a(f"ffn_noat{p}:")
        else:
            a(x)

    D2 = E('D2', 13)
    PK = E('PK', 1)
    for i in range(D2):
        ld_h(i)
    fill = []
    for i in range(56):
        p, k = divmod(i, 28)
        if i == PK:
            a("s_mov_b64 exec, 15")
            vm.issue("global_load_dword v14, v15, s[8:9] offset:4 sc1", "p1")
            a("s_mov_b64 exec, -1")
        if i + D2 == 28:
            vm.wait("p1")
            a("""
            s_mov_b64 exec, 15
            v_cmp_eq_u32 vcc, 0, v14
            s_cbranch_vccnz ffn_poll1
            ffn_go1:
            s_mov_b64 exec, -1
            """)
        if i == 29:
            fill = finish(0)
        vm.wait(f"h{i}")
        b = slot(i)
        for mt in range(2):
            c = ACC + 32 * p + 16 * mt
            cc = "0" if k == 0 else f"v[{c}:{c+15}]"
            a(f"v_mfma_f32_32x32x16_bf16 v[{c}:{c+15}], a[{8*k+4*mt}:{8*k+4*mt+3}], v[{b}:{b+3}], {cc}")
            if mt == 0:
                ld_h(i + D2)
            n = 0
            while fill and n < 3:
                x = fill.pop(0)
                put(x, 0)
                n += 2 if (isinstance(x, str) and x.startswith("ds_")) else 1
    st()
    for x in fill:
        put(x, 0)
    a("v_add_u32 v8, s30, v8")
    for x in finish(1):
        put(x, 1)
    a.c("end of the first iteration: publish, then go round again")
    a(f"""
    s_lshl_b32 s14, s50, 7
    s_add_u32 s14, s14, {BF}
    v_mov_b32 v30, s14
    v_mov_b32 v31, 2
    s_mov_b32 s51, 1
    s_mov_b32 s3, {XT3}
    s_mov_b32 s56, {XQ2}
    s_mov_b32 s57, {ST2}
    s_mov_b32 s36, {GR2}
    s_mov_b32 s58, {CN2}
    s_waitcnt vmcnt(0)
    s_barrier
    s_cmp_lg_u32 s10, 0
    s_cbranch_scc1 main_again
    s_mov_b64 exec, 1
    global_store_dword v30, v31, s[8:9] sc1
    s_mov_b64 exec, -1
    main_again:
    """)
    if DIAG:
        a("s_mov_b32 s71, 1")
        st.dump(71, 10, 8)
        a("s_mov_b64 exec, -1\nv_mbcnt_lo_u32_b32 v1, -1, 0\nv_mbcnt_hi_u32_b32 v1, -1, v1\ns_lshl_b32 s24, s10, 6\nv_add_u32 v0, s24, v1")
        a(f"s_memrealtime s[72:73]\ns_memtime s[{STAMP0}:{STAMP0+1}]\ns_waitcnt lgkmcnt(0)")
        st.n -= 1
    a("s_branch main_loop\nmain_done:")
    if DIAG:
        a("s_mov_b32 s71, 2")
    st.dump(71, 10, 8)
    a("main_end:\ns_endpgm")
    a("ffn_retry:")
    gran_loads(Vm(a))
    a("s_waitcnt vmcnt(0)\ns_branch ffn_chk")
    a("""
    ffn_poll1:
    global_load_dword v14, v15, s[8:9] offset:4 sc1
    s_waitcnt vmcnt(0)
    v_cmp_eq_u32 vcc, 0, v14
    s_cbranch_vccnz ffn_poll1
    s_branch ffn_go1
    """)
    a("ffn_helper:")
    a(f"""
    v_lshrrev_b32 v2, 3, v1
    v_bfe_u32 v3, v1, 2, 1
    v_bfe_u32 v4, v1, 4, 1
    v_xor_b32 v10, v4, v3
    v_and_b32 v3, 3, v1
    v_lshlrev_b32 v3, 4, v3
    v_lshl_add_u32 v3, v2, 12, v3
    v_lshl_add_u32 v4, v10, 6, v3
    v_lshl_add_u32 v10, v10, 7, v3
    s_lshl_b32 s24, s32, 7
    v_add_u32 v4, s24, v4
    s_lshl_b32 s14, s11, 8
    s_lshl_b32 s24, s35, 6
    s_add_u32 s24, s24, s14
    v_add_u32 v10, s24, v10
    s_lshl_b32 s20, s10, 19
    s_lshl_b32 s21, s10, 14
    v_bfe_u32 v2, v1, 2, 2
    v_lshrrev_b32 v3, 5, v1
    v_lshl_add_u32 v3, v3, 2, v2
    v_lshlrev_b32 v8, 7, v3
    v_bfe_u32 v3, v1, 4, 1
    v_lshl_add_u32 v8, v3, 5, v8
    v_and_b32 v3, 3, v1
    v_lshl_add_u32 v8, v3, 3, v8
    v_lshrrev_b32 v2, 1, v2
    v_lshl_add_u32 v9, v2, 6, v8
    v_xor_b32 v2, 1, v2
    v_lshl_add_u32 v8, v2, 6, v8
    s_lshl_b32 s31, s10, 11
    s_add_u32 s31, s31, 98304
    v_add_u32 v28, s31, v9
    v_add_u32 v29, s31, v8
    v_add_u32 v8, s21, v8
    v_add_u32 v9, s21, v9
    v_mov_b32 v16, 0
    v_mov_b32 v17, 0
    v_mov_b32 v18, 0
    v_mov_b32 v19, 0
    s_mov_b32 s25, 0x3f803f80
    v_lshlrev_b32 v13, 7, v0
    v_add_u32 v13, {BF}, v13
    """)
    pollB("h")
    vm = Vm(a)
    for i in range(16):
        a(f"s_add_u32 m0, s21, {i*1024}")
        a(f"s_add_u32 s24, s20, {i*32768}")
        vm.issue("buffer_load_dwordx4 v4, s[16:19], s24 offen sc1 lds", f"x{i//4}")
    for q in range(4):
        vm.wait(f"x{q}")
        for i in range(4):
            a(f"ds_read_b64_tr_b16 v[{32+4*i}:{33+4*i}], v9 offset:{(4*q+i)*1024}")
            a(f"ds_read_b64_tr_b16 v[{34+4*i}:{35+4*i}], v8 offset:{(4*q+i)*1024}")
        for i in range(4):
            a(f"s_waitcnt lgkmcnt({6-2*i})")
            for k in range(2):
                a(f"v_dot2c_f32_bf16 v16, s25, v{32+4*i+k}\nv_dot2c_f32_bf16 v17, v{32+4*i+k}, v{32+4*i+k}")
                a(f"v_dot2c_f32_bf16 v18, s25, v{34+4*i+k}\nv_dot2c_f32_bf16 v19, v{34+4*i+k}, v{34+4*i+k}")
    XB = 65536
    a(f"""
    v_lshlrev_b32 v2, 4, v0
    v_add_u32 v2, {XB}, v2
    ds_write_b128 v2, v[16:19]
    v_and_b32 v2, 31, v1
    v_lshrrev_b32 v3, 5, v1
    v_lshlrev_b32 v12, 3, v1
    v_lshlrev_b32 v2, 4, v2
    v_lshl_add_u32 v2, v3, 3, v2
    v_add_u32 v2, {XB}, v2
    s_waitcnt lgkmcnt(0)
    s_barrier
    s_cmp_lg_u32 s10, 0
    s_cbranch_scc1 ffn_help2
    """)
    for i in range(8):
        a(f"ds_read_b64 v[{32+2*i}:{33+2*i}], v2 offset:{i*512}")
    a(f"s_mov_b32 s26, {f2u(1.0/512)}\ns_mov_b32 s27, {f2u(1e-5)}\ns_waitcnt lgkmcnt(0)")
    for i in range(4):
        a(f"v_pk_add_f32 v[{32+2*i}:{33+2*i}], v[{32+2*i}:{33+2*i}], v[{40+2*i}:{41+2*i}]")
    a("v_pk_add_f32 v[32:33], v[32:33], v[36:37]\nv_pk_add_f32 v[34:35], v[34:35], v[38:39]\nv_pk_add_f32 v[32:33], v[32:33], v[34:35]")
    a(f"""
    v_mul_f32 v32, s26, v32
    v_mul_f32 v33, s26, v33
    v_fma_f32 v33, -v32, v32, v33
    v_max_f32 v33, 0, v33
    v_cvt_pk_bf16_f32 v32, -v32, -v32
    v_cvt_pk_bf16_f32 v33, v33, v33
    v_lshlrev_b32 v33, 16, v33
    v_add_f32 v33, s27, v33
    v_cvt_pk_bf16_f32 v33, v33, v33
    v_lshlrev_b32 v33, 16, v33
    v_sqrt_f32 v33, v33
    v_cvt_pk_bf16_f32 v33, v33, v33
    v_lshlrev_b32 v33, 16, v33
    s_lshl_b32 s24, s32, 9
    s_add_u32 s24, s24, s36
    v_add_u32 v12, s24, v12
    global_store_dwordx2 v12, v[32:33], s[8:9] sc1
    ffn_help2:
    """)
    for g in range(2):
        a(f"s_add_u32 m0, s31, {g*1024}\ns_lshl_b32 s24, s46, 12\ns_add_u32 s24, s24, {g*32768}")
        a("buffer_load_dwordx4 v10, s[16:19], s24 offen sc1 lds")
    a("s_cmp_lg_u32 s51, 0\ns_cbranch_scc1 ffn_help3")
    wn[0] = wn_conv
    while wn[0] < 88:
        wload()
    a("ffn_help3:\ns_waitcnt vmcnt(0)")
    for p in range(2):
        for g in range(2):
            a(f"ds_read_b64_tr_b16 v[{56+4*p+2*g}:{57+4*p+2*g}], v{28+p} offset:{g*1024}")
    g2_setup("h")
    a("s_barrier\ns_branch ffn_sync\ncode_end:")
    return kd("main_kernel", 512, 64, 256), ("main_kernel", 256, 256, LDS)


def main():
    out = sys.argv[1] if len(sys.argv) > 1 else f"cdna_kernels/{NAME}.s"
    global DIAG
    DIAG = "--diag" in sys.argv
    a = Asm()
    k0, l0 = gen_prep(a)
    k1, m1 = gen_mega(a)
    launches = [l0, m1]
    hdr = "; generated by work/gen.py (hand-written instruction streams, script-expanded)\n"
    for n, g, b, l in launches:
        hdr += f"; @launch kernel={n} grid=({g},1,1) block=({b},1,1) lds={l}\n"
    txt = hdr + '.amdgcn_target "amdgcn-amd-amdhsa--gfx950"\n.text\n' + a.text()
    txt += '.section .rodata,"a"\n'
    for k in (k0, k1):
        txt += ".p2align 6\n" + k
    open(out, "w").write(txt)


if __name__ == "__main__":
    main()
```
